```python
import torch

def _softmax(x, axis=-1):
    return torch.softmax(x, dim=axis)
def _gelu(x):
    return torch.nn.functional.gelu(x, approximate="tanh")
def _silu(x):
    return torch.nn.functional.silu(x)
def _sigmoid(x):
    return torch.sigmoid(x)
def _layernorm(x, axis=-1, eps=1e-5):
    m = x.mean(dim=axis, keepdim=True)
    v = x.var(dim=axis, keepdim=True, unbiased=False)
    return (x - m) / torch.sqrt(v + eps)
def _scatter_add(tgt, idx, src, axis=0):
    return tgt.clone().index_add_(axis, idx, src)
def _segment_sum(src, seg, n):
    out = torch.zeros((n,) + src.shape[1:], dtype=src.dtype)
    return out.index_add_(0, seg, src)
def _pad(x, pw):
    flat = tuple(v for pair in reversed(pw) for v in pair)
    return torch.nn.functional.pad(x, flat)

kernel_name = 'interleave_layers__ssm_conv_h3__swiglu_ffn__prompt'

def setup_inputs():

    _w = (lambda a: (lambda t: t.to(torch.bfloat16) if t.is_floating_point() else t)(torch.as_tensor(a)))
    def _A_setup():
        B, S, D = 1, 2048, 640
        ks = 4
        return {
            "q": _w((lambda *s: torch.randn(*s, dtype=torch.bfloat16) * 0.05)(B, S, D)),
            "k": _w((lambda *s: torch.randn(*s, dtype=torch.bfloat16) * 0.8)(B, S, D)),
            "v": _w((lambda *s: torch.randn(*s, dtype=torch.bfloat16) * 0.8)(B, S, D)),
            "shift_k": _w((lambda *s: torch.randn(*s, dtype=torch.bfloat16) * 0.8)(D, ks) * 0.5),
            "ssm_k": _w((lambda *s: torch.randn(*s, dtype=torch.bfloat16) * 0.8)(D, S) * (1.0 / S ** 0.5)),
            "ssm_D": _w((lambda *s: torch.randn(*s, dtype=torch.bfloat16) * 0.8)(D)),
        }
    _A_in = _A_setup()

    def _B_setup():
        B, S, D, F = 1, 2048, 640, 1536
        return {
            "x": _w((lambda *s: torch.randn(*s, dtype=torch.bfloat16) * 0.05)(B, S, D)),
            "w_gate": _w((lambda *s: torch.randn(*s, dtype=torch.bfloat16) * 0.1)(D, F)),
            "w_up": _w((lambda *s: torch.randn(*s, dtype=torch.bfloat16) * 0.1)(D, F)),
            "w_down": _w((lambda *s: torch.randn(*s, dtype=torch.bfloat16) * 0.1)(F, D)),
        }
    _B_in = _B_setup()

    return {
        "A_q": _A_in["q"],
        "A_k": _A_in["k"],
        "A_v": _A_in["v"],
        "A_shift_k": _A_in["shift_k"],
        "A_ssm_k": _A_in["ssm_k"],
        "A_ssm_D": _A_in["ssm_D"],
        "B_x": _B_in["x"],
        "B_w_gate": _B_in["w_gate"],
        "B_w_up": _B_in["w_up"],
        "B_w_down": _B_in["w_down"],
    }

def reference(A_q, A_k, A_v, A_shift_k, A_ssm_k, A_ssm_D, B_x, B_w_gate, B_w_up, B_w_down):
    def _A_ref(q, k, v, shift_k, ssm_k, ssm_D):
        B, S, D = q.shape
        ks = shift_k.shape[-1]
        k_pad = _pad(k, ((0, 0), (ks - 1, 0), (0, 0)))
        k_shift = torch.zeros_like(k)
        for t in range(ks):
            k_shift = k_shift + k_pad[:, t:t + S, :] * shift_k[:, ks - 1 - t][None, None, :]
        kv = k_shift * v
        L = 2 * S
        kv_pad = _pad(kv, ((0, 0), (0, S), (0, 0)))
        kf_pad = _pad(ssm_k, ((0, 0), (0, S)))
        kv_f = (lambda x, axes=(-2,-1): torch.fft.rfft2(x.float(), dim=axes))(kv_pad[:, None, :, :], axes=(1, 2))
        kf_f = (lambda x, axes=(-2,-1): torch.fft.rfft2(x.float(), dim=axes))(kf_pad[:, None, :], axes=(1, 2))
        kf_f = (lambda x, *d: x.permute(*d))(kf_f, 1, 2, 0)
        y_f = kv_f * kf_f[None, :, :, :]
        y = (lambda x, s, axes=(-2,-1): torch.fft.irfft2(x, s=s, dim=axes).to(torch.bfloat16))(y_f, (1, L), axes=(1, 2))[:, 0, :S, :]
        y = y + kv * ssm_D[None, None, :]
        return q * y

    def _B_ref(x, w_gate, w_up, w_down):
        g = _silu(x @ w_gate)
        u = x @ w_up
        return (g * u) @ w_down

    x = A_q
    x = x + _A_ref(_layernorm(x, axis=-1), A_k, A_v, A_shift_k, A_ssm_k, A_ssm_D)
    x = x + _B_ref(_layernorm(x, axis=-1), B_w_gate, B_w_up, B_w_down)
    x = x + _A_ref(_layernorm(x, axis=-1), A_k, A_v, A_shift_k, A_ssm_k, A_ssm_D)
    x = x + _B_ref(_layernorm(x, axis=-1), B_w_gate, B_w_up, B_w_down)
    return x
```

```python
import re

TRANS = ("v_exp_f32", "v_log_f32", "v_rcp_f32", "v_rsq_f32", "v_sqrt_f32", "v_sin_f32", "v_cos_f32", "v_rcp_iflag_f32")
_REG = re.compile(r"\b([vas])(\d+)\b|\b([vas])\[(\d+):(\d+)\]")

def regs_of(op):
    out = set()
    for m in _REG.finditer(op):
        if m.group(1):
            out.add((m.group(1), int(m.group(2))))
        else:
            for i in range(int(m.group(4)), int(m.group(5)) + 1):
                out.add((m.group(3), i))
    if re.search(r"\bvcc(_lo|_hi)?\b", op): out.add(("vcc", 0))
    if re.search(r"\bm0\b", op): out.add(("m0", 0))
    if re.search(r"\bexec(_lo|_hi)?\b", op): out.add(("exec", 0))
    return out

def split_ops(s):
    ops = []; depth = 0; cur = ""
    for ch in s:
        if ch == "[": depth += 1
        if ch == "]": depth -= 1
        if ch == "," and depth == 0:
            ops.append(cur.strip()); cur = ""
        else:
            cur += ch
    if cur.strip(): ops.append(cur.strip())
    return ops

class Ins:
    __slots__ = ("text", "mn", "kind", "wr", "rd", "passes", "srcc", "ab", "states", "dpp", "widestore", "sdata")
    def __init__(self, text):
        self.text = text
        t = text.split(";")[0].strip()
        parts = t.split(None, 1)
        mn = parts[0]; self.mn = mn
        rest = parts[1] if len(parts) > 1 else ""
        ops = split_ops(rest)
        self.wr = set(); self.rd = set(); self.passes = 0; self.srcc = set(); self.ab = set()
        self.states = 1; self.dpp = False; self.widestore = False; self.sdata = set()
        R = regs_of
        if mn == "s_nop":
            self.kind = "nop"; self.states = int(ops[0], 0) + 1
        elif mn.startswith("v_mfma"):
            self.kind = "mfma"
            self.passes = 8 if "32x32x16" in mn else 4
            self.wr = R(ops[0]); self.ab = R(ops[1]) | R(ops[2]); self.srcc = R(ops[3]); self.rd = self.ab | self.srcc
        elif mn.startswith("v_"):
            self.kind = "valu"
            self.dpp = ("_dpp" in mn) or ("quad_perm" in rest) or ("row_" in rest)
            if (mn.startswith("v_permlane") and "swap" in mn) or mn.startswith("v_swap"):
                self.wr = R(ops[0]) | R(ops[1]); self.rd = set(self.wr)
            elif mn.startswith("v_cmp"):
                self.wr = R(ops[0])
                for o in ops[1:]: self.rd |= R(o)
            elif mn.startswith(("v_add_co", "v_sub_co", "v_addc_co", "v_subb_co", "v_subrev_co")):
                self.wr = R(ops[0]) | R(ops[1])
                for o in ops[2:]: self.rd |= R(o)
            else:
                self.wr = R(ops[0])
                for o in ops[1:]: self.rd |= R(o)
                if mn.startswith(("v_fmac", "v_dot2c", "v_mac", "v_pk_fmac")) or self.dpp: self.rd |= self.wr
        elif mn.startswith("ds_"):
            self.kind = "ds"
            if mn.startswith(("ds_read", "ds_bpermute", "ds_permute", "ds_swizzle")):
                self.wr = R(ops[0])
                for o in ops[1:]: self.rd |= R(o)
            else:
                for o in ops: self.rd |= R(o)
        elif mn.startswith(("buffer_", "global_")):
            self.kind = "vmem"
            islds = bool(re.search(r"\blds\b", rest))
            if mn in ("buffer_wbl2", "buffer_inv"):
                pass
            elif "load" in mn and not islds:
                self.wr = R(ops[0])
                for o in ops[1:]: self.rd |= R(o)
            else:
                for o in ops: self.rd |= R(o)
                if islds: self.rd.add(("m0", 0))
                if "store" in mn and ("x3" in mn or "x4" in mn):
                    self.widestore = True
                    self.sdata = R(ops[0]) if mn.startswith("buffer") else R(ops[1])
                if "atomic" in mn and re.search(r"\bsc0\b", rest):
                    self.wr = R(ops[0])
        elif mn.startswith("s_"):
            self.kind = "salu"
            if mn.startswith(("s_waitcnt", "s_barrier", "s_branch", "s_cbranch", "s_sleep", "s_setprio", "s_endpgm", "s_cmp", "s_bitcmp")):
                for o in ops: self.rd |= R(o)
            else:
                if ops:
                    self.wr = R(ops[0])
                    for o in ops[1:]: self.rd |= R(o)
                if "saveexec" in mn: self.wr.add(("exec", 0))
        else:
            raise ValueError("unknown instr " + text)

def is_vec(r): return r[0] in ("v", "a")
def is_sc(r): return r[0] in ("s", "vcc")

def need(p, c):
    n = 0
    pv = {r for r in p.wr if is_vec(r)}
    if p.kind == "valu":
        if c.kind == "mfma" and pv & c.rd: n = max(n, 2)
        if c.kind == "valu":
            if p.mn.startswith(TRANS) and (pv & (c.rd | c.wr)): n = max(n, 1)
            if c.dpp and pv & c.rd: n = max(n, 2)
            if c.mn.startswith("v_permlane") and pv & c.rd: n = max(n, 2)
            if c.mn.startswith(("v_readfirstlane", "v_readlane")) and pv & c.rd: n = max(n, 1)
            if p.mn.startswith("v_dot") and (pv & (c.rd | c.wr)):
                n = max(n, 3)
            if "sdwa" in p.mn and pv & (c.rd | c.wr): n = max(n, 1)
        if p.mn.startswith(TRANS) and c.kind in ("ds", "vmem") and pv & c.rd: n = max(n, 1)
        if p.mn.startswith("v_dot") and c.kind in ("ds", "vmem", "mfma") and pv & c.rd: n = max(n, 3)
        ps = {r for r in p.wr if is_sc(r)}
        if ps:
            if c.kind == "valu" and ps & c.rd:
                n = max(n, 4 if c.mn.startswith(("v_readlane", "v_writelane")) else 2)
            if c.kind == "valu" and c.mn.startswith("v_cndmask") and ("vcc", 0) in ps: n = max(n, 2)
            if c.kind == "vmem" and ps & c.rd: n = max(n, 5)
            if c.kind == "salu" and ps & c.rd: n = max(n, 1)
    elif p.kind == "mfma":
        big = p.passes == 8
        if c.kind == "mfma":
            if pv & c.ab: n = max(n, 12 if big else 8)
            if pv & c.srcc:
                if not (c.srcc == pv and c.passes == p.passes): n = max(n, 10 if big else 6)
            if pv & c.wr and not (c.srcc == pv and c.passes == p.passes): n = max(n, 12 if big else 8)
        elif c.kind in ("valu", "ds", "vmem"):
            if pv & (c.rd | c.wr): n = max(n, 12 if big else 8)
            if c.kind == "valu" and (p.srcc & c.wr): n = max(n, 7 if big else 3)
            if c.kind in ("ds", "vmem") and (p.srcc & c.wr): n = max(n, 7 if big else 3)
    elif p.kind == "salu":
        if ("m0", 0) in p.wr and c.kind in ("vmem", "ds") and ("m0", 0) in c.rd: n = max(n, 1)
    elif p.kind == "vmem":
        if p.widestore and p.sdata & c.wr: n = max(n, 2)
    return n

class K:
    def __init__(self, name, grid, block, lds=0, vgpr=256, agpr=0, sgpr=102):
        self.name = name; self.grid = grid; self.block = block; self.lds = lds
        self.vgpr = vgpr; self.agpr = agpr; self.sgpr = sgpr
        self.lines = []
        self.hist = []
        self._lbl = 0
        self.vm = []
        self.lg = []
        self.nnop = 0
        self.ninstr = 0
    def _emit(self, ln, tag=None):
        ins = Ins(ln)
        req = 0; dist = 0
        for p in reversed(self.hist):
            r = need(p, ins) - dist
            if r > req: req = r
            dist += p.states
            if dist > 14: break
        while req > 0:
            n = min(req, 16)
            nop = Ins(f"s_nop {n-1}")
            self.lines.append(f"    s_nop {n-1}"); self.hist.append(nop); req -= n; self.nnop += 1
        self.lines.append("    " + ln)
        self.hist.append(ins)
        self.ninstr += 1
        if len(self.hist) > 32: self.hist = self.hist[-32:]
        for (kind, n) in ins.wr | ins.rd:
            if kind == "v": assert n < self.vgpr, f"v{n} >= {self.vgpr}: {ln}"
            if kind == "a": assert n < self.agpr, f"a{n} >= {self.agpr}: {ln}"
            if kind == "s": assert n < self.sgpr, f"s{n}: {ln}"
        if ins.kind == "vmem": self.vm.append(tag)
        if ins.kind == "ds": self.lg.append(tag)
        if ins.mn == "s_waitcnt":
            m = re.search(r"vmcnt\((\d+)\)", ln)
            if m:
                n = int(m.group(1)); self.vm = self.vm[len(self.vm) - n:] if n < len(self.vm) and n > 0 else ([] if n == 0 else self.vm)
            m = re.search(r"lgkmcnt\((\d+)\)", ln)
            if m:
                n = int(m.group(1)); self.lg = self.lg[len(self.lg) - n:] if n < len(self.lg) and n > 0 else ([] if n == 0 else self.lg)
    def __call__(self, s, tag=None):
        for ln in s.strip("\n").split("\n"):
            ln = ln.strip()
            if not ln: continue
            if ln.startswith(";"):
                self.lines.append("    " + ln); continue
            if ln.endswith(":"):
                self.label(ln[:-1]); continue
            self._emit(ln, tag)
    def wait_vm(self, tag):
        idx = [i for i, t in enumerate(self.vm) if t == tag]
        if not idx: return
        n = len(self.vm) - 1 - idx[-1]
        n = min(n, 63)
        self(f"s_waitcnt vmcnt({n})")
    def wait_lg(self, tag):
        idx = [i for i, t in enumerate(self.lg) if t == tag]
        if not idx: return
        n = len(self.lg) - 1 - idx[-1]
        n = min(n, 15)
        self(f"s_waitcnt lgkmcnt({n})")
    def label(self, l):
        self.lines.append(l + ":")
    def stamp(self, i):
        if getattr(self, "stb", None) is None: return
        self(f"s_memrealtime s[{self.stb+2*i}:{self.stb+2*i+1}]")
        self.nst = max(getattr(self, "nst", 0), i + 1)
    def stamp_flush(self, srd, soff_expr_reg, vtmp=0):
        if getattr(self, "stb", None) is None: return
        self("s_waitcnt lgkmcnt(0) vmcnt(0)")
        self.stamp(7)
        self("s_waitcnt lgkmcnt(0)")
        lbl = self.newlabel("Lst")
        self(f"v_cmp_eq_u32 vcc, 0, v0\ns_and_saveexec_b64 s[{self.stb+16}:{self.stb+17}], vcc\ns_cbranch_execz {lbl}")
        for i in range(8): self(f"v_mov_b32 v{8+i}, s{self.stb+2*i}")
        self(f"v_mov_b32 v1, 0\nbuffer_store_dwordx4 v[8:11], v1, s[{srd}:{srd+3}], s{soff_expr_reg} offen\nbuffer_store_dwordx4 v[12:15], v1, s[{srd}:{srd+3}], s{soff_expr_reg} offen offset:16")
        self(f"{lbl}:")
    def fence(self, n=12):
        self(f"s_nop {n-1}")
    def newlabel(self, p="L"):
        self._lbl += 1
        return f"{p}_{self.name}_{self._lbl}"
    def text(self):
        o = [f".globl {self.name}", ".p2align 8", f".type {self.name},@function", f"{self.name}:"]
        o += self.lines
        o.append("    s_endpgm")
        return "\n".join(o)
    def desc(self):
        acc = (self.vgpr + 3) // 4 * 4
        nfv = acc + self.agpr if self.agpr else self.vgpr
        return f""".p2align 6
.amdhsa_kernel {self.name}
  .amdhsa_next_free_vgpr {nfv}
  .amdhsa_next_free_sgpr {self.sgpr}
  .amdhsa_accum_offset {acc}
  .amdhsa_group_segment_fixed_size 0
  .amdhsa_kernarg_size 104
  .amdhsa_user_sgpr_count 2
  .amdhsa_user_sgpr_kernarg_segment_ptr 1
  .amdhsa_system_sgpr_workgroup_id_x 1
  .amdhsa_float_denorm_mode_32 3
  .amdhsa_float_denorm_mode_16_64 3
.end_amdhsa_kernel"""

HEADER = """; Kernarg layout for this problem (104 bytes, ptrs only, base s[0:1]):
"""

def build(launches, kernels):
    o = HEADER
    for k in launches:
        o += f"; @launch kernel={k.name} grid=({k.grid},1,1) block=({k.block},1,1) lds={k.lds}\n"
    o += '.amdgcn_target "amdgcn-amd-amdhsa--gfx950"\n.text\n'
    for k in kernels:
        o += k.text() + "\n"
    o += '.section .rodata,"a"\n'
    for k in kernels:
        o += k.desc() + "\n"
    return o
```

```python
from asmlib import *

WS_KT  = 0x0000000
WS_XN  = 0x0300000
WS_X1  = 0x0600000
WS_Y4  = 0x0900000
WS_X3  = 0x0C00000
WS_W1P = 0x1000000
WS_W2P = 0x1400000
WS_H1  = 0x1800000
WS_H2  = 0x2000000
WS_SQ  = 0x2800000
WS_ST  = 0x2C00000
WS_ST2 = 0x2C80000
WS_FL  = 0x2D00000
WS_DBG = 0x8000000
WS_SIZE = 0x10000000
NB = 2048 * 640 * 2
FLS = 8
SPIN = 4000000

def srd(k, d, lo, hi, nbytes):
    k(f"s_mov_b32 s{d}, s{lo}\ns_mov_b32 s{d+1}, s{hi}\ns_mov_b32 s{d+2}, {nbytes}\ns_mov_b32 s{d+3}, 0x20000")
def unpack_lo(k, d, s): k(f"v_lshlrev_b32 v{d}, 16, v{s}")
def unpack_hi(k, d, s): k(f"v_and_b32 v{d}, 0xffff0000, v{s}")
def unpack(k, d, s, half): (unpack_hi if half else unpack_lo)(k, d, s)
def round2(k, a, b, t):
    k(f"v_cvt_pk_bf16_f32 v{t}, v{a}, v{b}")
    unpack_lo(k, a, t); unpack_hi(k, b, t)

def ln_scalars(k, s1, s2, t):
    inv = "0x3acccccd"
    k(f"""
    v_mul_f32 v{s1}, {inv}, v{s1}
    v_mul_f32 v{s2}, {inv}, v{s2}
    v_fma_f32 v{s2}, -v{s1}, v{s1}, v{s2}
    v_max_f32 v{s2}, 0, v{s2}
    """)
    round2(k, s1, s2, t)
    k(f"""
    v_add_f32 v{s2}, 0x3727c5ac, v{s2}
    v_cvt_pk_bf16_f32 v{t}, v{s2}, v{s2}
    v_lshlrev_b32 v{s2}, 16, v{t}
    v_sqrt_f32 v{s2}, v{s2}
    v_cvt_pk_bf16_f32 v{t}, v{s2}, v{s2}
    v_lshlrev_b32 v{s2}, 16, v{t}
    v_rcp_f32 v{s2}, v{s2}
    """)

S_WS = 24
S_DBG = 20
S_WAVE = 40
S_NONCE = 56
S_SPIN = 58
S_EX = 60

def nonce_publish(k, vt):
    l = k.newlabel("Lnp")
    k(f"""
    s_or_b32 s59, s2, s{S_WAVE}
    s_cmp_lg_u32 s59, 0
    s_cbranch_scc1 {l}
    s_memrealtime s[{S_NONCE}:{S_NONCE+1}]
    s_waitcnt lgkmcnt(0)
    s_or_b32 s{S_NONCE}, s{S_NONCE}, 1
    v_mov_b32 v{vt}, s{S_NONCE}
    v_mov_b32 v{vt+1}, s{S_NONCE+1}
    s_mov_b64 exec, 1
    buffer_store_dwordx2 v[{vt}:{vt+1}], off, s[{S_DBG}:{S_DBG+3}], 0 sc1
    s_mov_b64 exec, -1
    {l}:
    """)

def nonce_get(k, vt, abort):
    l = k.newlabel("Lng")
    k(f"""
    {l}:
    buffer_load_dwordx2 v[{vt}:{vt+1}], off, s[{S_DBG}:{S_DBG+3}], 0 sc1
    s_waitcnt vmcnt(0)
    v_readfirstlane_b32 s{S_NONCE}, v{vt}
    v_readfirstlane_b32 s{S_NONCE+1}, v{vt+1}
    s_sub_u32 s{S_SPIN}, s{S_SPIN}, 1
    s_cbranch_scc1 {abort}
    s_cmp_eq_u32 s{S_NONCE}, 0
    s_cbranch_scc1 {l}
    """)

def flag_set(k, vt, soff):
    k(f"""
    v_mov_b32 v{vt}, s{S_NONCE}
    v_mov_b32 v{vt+1}, s{S_NONCE+1}
    s_mov_b64 exec, 1
    buffer_store_dwordx2 v[{vt}:{vt+1}], off, s[{S_WS}:{S_WS+3}], s{soff} sc1
    s_mov_b64 exec, -1
    """)

def flag_wait(k, vt, vaddr, soff, nlanes, abort):
    l = k.newlabel("Lfw")
    mask = (1 << nlanes) - 1
    if nlanes == 64: k("s_mov_b64 exec, -1")
    elif nlanes <= 32: k(f"s_mov_b64 exec, {hex(mask)}")
    else: k(f"s_mov_b32 exec_lo, -1\ns_mov_b32 exec_hi, {hex(mask >> 32)}")
    k(f"""
    {l}:
    buffer_load_dwordx2 v[{vt}:{vt+1}], v{vaddr}, s[{S_WS}:{S_WS+3}], s{soff} offen sc1
    s_waitcnt vmcnt(0)
    s_sub_u32 s{S_SPIN}, s{S_SPIN}, 1
    s_cbranch_scc1 {abort}
    v_cmp_ne_u64 vcc, s[{S_NONCE}:{S_NONCE+1}], v[{vt}:{vt+1}]
    s_cbranch_vccnz {l}
    s_mov_b64 exec, -1
    """)
```

```python
from gen_common import *

HCP = 4160
UROFF = 4 * HCP
CP = UROFF + 4608
STF = " sc1"
HWAIT = True
CLK = False

def prologue(k, endlbl):
    k(f"""
    s_cmp_ge_u32 s2, 256
    s_cbranch_scc1 {endlbl}
    """)
    if k.stb is not None:
        for i in range(8): k.stamp(i)
    k(f"""
    s_load_dwordx16 s[64:79], s[0:1], 0
    s_load_dwordx4 s[80:83], s[0:1], 64
    s_load_dwordx2 s[20:21], s[0:1], 88
    s_load_dwordx2 s[24:25], s[0:1], 96
    v_lshlrev_b32 v3, 4, v0                 ; tid*16
    """)

def prologue2(k):
    k(f"""
    v_lshrrev_b32 v1, 6, v0
    v_and_b32 v2, 63, v0                    ; lane
    v_readfirstlane_b32 s{S_WAVE}, v1
    s_mov_b32 s50, 0x05040100
    s_mov_b32 s51, 0x07060302
    s_mov_b32 s{S_SPIN}, {SPIN}
    s_mov_b32 s22, 256
    s_mov_b32 s23, 0x20000
    s_mov_b32 s26, {WS_SIZE}
    s_mov_b32 s27, 0x20000
    """)

def code_prefetch(k, start, end, nbytes, vt):
    n16 = (nbytes + 16383) // 16384
    k(f"""
    s_getpc_b64 s[28:29]
    Lpc_{k.name}:
    s_add_u32 s28, s28, {start}-Lpc_{k.name}
    s_addc_u32 s29, s29, -1
    s_mov_b32 s30, {end}-{start}
    s_mov_b32 s31, 0x20000
    s_lshr_b32 s3, s2, 3
    s_and_b32 s3, s3, 3
    s_lshl_b32 s3, s3, 12
    """)
    for i in range(n16):
        k(f"buffer_load_dwordx4 v[{vt}:{vt+3}], v3, s[28:31], s3 offen")
        if i < n16 - 1: k("s_add_u32 s3, s3, 16384")

def conv_role(k, endlbl):
    k(f"""
    s_lshr_b32 s41, s2, 4                   ; slab
    s_and_b32 s42, s2, 15                   ; j
    v_and_b32 v4, 7, v0                     ; gr
    v_lshrrev_b32 v5, 3, v0                 ; rr
    s_lshl_b32 s3, s42, 5
    v_add_u32 v6, s3, v5
    v_mul_u32_u24 v7, 5120, v6              ; t0*1280
    s_lshl_b32 s3, s41, 7
    v_lshl_add_u32 v7, v4, 4, v7
    v_add_u32 v7, s3, v7
    s_mov_b32 s5, 0x7fffff00
    v_subrev_u32 v56, 3840, v7
    v_subrev_u32 v57, 2560, v7
    v_subrev_u32 v58, 1280, v7
    v_min_u32 v56, s5, v56
    v_min_u32 v57, s5, v57
    v_min_u32 v58, s5, v58
    s_lshl_b32 s3, s41, 9
    v_lshlrev_b32 v59, 6, v4
    v_add_u32 v59, s3, v59
    s_waitcnt lgkmcnt(0)
    """)
    srd(k, 8, 66, 67, NB); srd(k, 12, 68, 69, NB); srd(k, 16, 70, 71, 640 * 8)
    k("""
    buffer_load_dwordx4 v[76:79], v7, s[8:11], 0 offen
    buffer_load_dwordx4 v[80:83], v7, s[8:11], 0 offen offset:1280
    buffer_load_dwordx4 v[84:87], v7, s[8:11], 0 offen offset:2560
    buffer_load_dwordx4 v[88:91], v7, s[8:11], 0 offen offset:3840
    buffer_load_dwordx4 v[92:95], v7, s[12:15], 0 offen
    buffer_load_dwordx4 v[96:99], v7, s[12:15], 0 offen offset:1280
    buffer_load_dwordx4 v[100:103], v7, s[12:15], 0 offen offset:2560
    buffer_load_dwordx4 v[104:107], v7, s[12:15], 0 offen offset:3840
    buffer_load_dwordx4 v[64:67], v56, s[8:11], 0 offen
    buffer_load_dwordx4 v[68:71], v57, s[8:11], 0 offen
    buffer_load_dwordx4 v[72:75], v58, s[8:11], 0 offen
    buffer_load_dwordx4 v[108:111], v59, s[16:19], 0 offen
    buffer_load_dwordx4 v[112:115], v59, s[16:19], 0 offen offset:16
    buffer_load_dwordx4 v[116:119], v59, s[16:19], 0 offen offset:32
    buffer_load_dwordx4 v[120:123], v59, s[16:19], 0 offen offset:48
    """, tag="kv")
    prologue2(k)
    nonce_publish(k, 8)
    k.vm = k.vm[:-1]
    k(f"""
    s_lshl_b32 s43, s2, 2
    s_add_u32 s43, s43, s{S_WAVE}
    s_lshl_b32 s4, s43, 12
    s_add_u32 s32, s72, s4
    s_addc_u32 s33, s73, 0
    s_mov_b32 s34, 4096
    s_mov_b32 s35, 0x20000
    s_lshl_b32 s4, s43, 1
    s_and_b32 s4, s4, -4
    s_load_dword s44, s[74:75], s4          ; D pair
    v_lshlrev_b32 v60, 4, v2                ; lane*16
    v_subrev_u32 v61, 32, v60
    v_subrev_u32 v62, 16, v60
    v_min_u32 v61, s5, v61
    v_min_u32 v62, s5, v62
    v_lshlrev_b32 v63, 15, v4               ; 2gr*16384
    v_lshl_add_u32 v63, v6, 4, v63          ; + tq*16
    s_lshl_b32 s3, s41, 18                  ; 16*slab*16384
    s_add_u32 s36, s3, {WS_KT}
    s_add_u32 s37, s3, {WS_KT + 8192}
    s_add_u32 s38, s3, {WS_KT + 16384}
    s_add_u32 s39, s3, {WS_KT + 24576}
    s_mul_i32 s45, s{S_WAVE}, {CP}
    v_and_b32 v8, 15, v2                    ; n / m
    v_lshrrev_b32 v9, 4, v2                 ; kq / q
    v_mov_b32 v12, 0
    v_mov_b32 v13, 0
    v_mov_b32 v14, 0
    v_mov_b32 v15, 0
    v_and_b32 v10, 31, v2
    v_lshlrev_b32 v10, 4, v10
    v_add_u32 v10, s45, v10
    ds_write_b128 v10, v[12:15] offset:{UROFF + 4096}
    v_add_u32 v16, 1, v8                    ; m+1
    v_and_b32 v17, 3, v16                   ; e
    v_sub_u32 v16, v16, v17
    v_lshl_add_u32 v16, v9, 3, v16
    v_lshlrev_b32 v16, 1, v16
    v_mul_u32_u24 v17, {HCP}, v17
    v_add3_u32 v228, v16, v17, s45          ; vA
    v_lshlrev_b32 v16, 5, v8
    v_sub_u32 v16, {UROFF + 480}, v16
    v_lshl_add_u32 v16, v9, 4, v16
    v_add_u32 v229, s45, v16                ; vB
    v_lshlrev_b32 v17, 3, v0
    v_sub_u32 v230, {UROFF + 4088 - 2048}, v17
    v_add_u32 v231, {2*CP}, v230
    v_lshlrev_b32 v232, 5, v8
    v_lshl_add_u32 v232, v9, 3, v232
    v_add_u32 v232, s45, v232
    v_lshlrev_b32 v233, 2, v0
    v_add_u32 v234, {2*CP}, v233
    v_lshlrev_b32 v235, {FLS}, v2
    v_add_u32 v236, s45, v60
    ; A_D fragment
    s_waitcnt lgkmcnt(0)
    s_and_b32 s4, s43, 1
    s_lshl_b32 s4, s4, 4
    s_lshr_b32 s44, s44, s4
    s_and_b32 s44, s44, 0xffff              ; D bits
    v_lshl_add_u32 v16, v9, 3, v8
    v_sub_u32 v16, 15, v16                  ; j*
    v_and_b32 v17, 1, v16
    v_lshlrev_b32 v17, 4, v17
    v_lshlrev_b32 v17, v17, s44
    v_lshrrev_b32 v16, 1, v16
    """)
    for e in range(4):
        k(f"v_cmp_eq_u32 vcc, {e}, v16\nv_cndmask_b32 v{224+e}, 0, v17, vcc")
    k("s_waitcnt vmcnt(0)")
    k.stamp(1)
    k(f"buffer_load_dwordx2 v[184:185], off, s[{S_DBG}:{S_DBG+3}], 0 sc1", tag="nonce")
    for p in range(4):
        for rho in range(7):
            unpack_lo(k, 8 + 2 * rho, 64 + 4 * rho + p); unpack_hi(k, 9 + 2 * rho, 64 + 4 * rho + p)
        for j in range(4):
            unpack(k, 22 + 2 * j, 108 + 2 * (2 * p) + (j >> 1), j & 1)
            unpack(k, 23 + 2 * j, 108 + 2 * (2 * p + 1) + (j >> 1), j & 1)
        for i in range(4):
            a = 32 + 2 * i
            unpack_lo(k, 30, 92 + 4 * i + p); unpack_hi(k, 31, 92 + 4 * i + p)
            k(f"v_pk_mul_f32 v[{a}:{a+1}], v[{8+2*i}:{9+2*i}], v[28:29]")
            for j in (2, 1, 0):
                rho = i + 3 - j
                k(f"v_pk_fma_f32 v[{a}:{a+1}], v[{8+2*rho}:{9+2*rho}], v[{22+2*j}:{23+2*j}], v[{a}:{a+1}]")
            k(f"v_pk_mul_f32 v[{a}:{a+1}], v[{a}:{a+1}], v[30:31]")
        for e in range(2):
            c = 2 * p + e
            k(f"v_cvt_pk_bf16_f32 v{40+2*c}, v{38+e}, v{36+e}\nv_cvt_pk_bf16_f32 v{41+2*c}, v{34+e}, v{32+e}")
        k(f"buffer_store_dwordx4 v[{40+4*p}:{43+4*p}], v63, s[24:27], s{36+p} offen sc1", tag="kts")
    for rho in range(4):
        w = 144 + 8 * rho
        k(f"buffer_load_dwordx4 v[{w}:{w+3}], v60, s[32:35], 0 offen offset:{1024*rho}\nbuffer_load_dwordx2 v[{w+4}:{w+5}], v60, s[32:35], 0 offen offset:{1024*rho+16}", tag="h")
    k("buffer_load_dwordx4 v[176:179], v61, s[32:35], 0 offen\nbuffer_load_dwordx2 v[180:181], v62, s[32:35], 0 offen", tag="h")
    def hc_build():
        for rho in range(5):
            w = 144 + 8 * rho; off = 32 + 1024 * rho if rho < 4 else 0
            t = 64 + 12 * rho
            k(f"ds_write_b128 v236, v[{w}:{w+3}] offset:{off}")
            for i in range(4): k(f"v_alignbyte_b32 v{t+i}, v{w+i+1}, v{w+i}, 2")
            k(f"ds_write_b128 v236, v[{t}:{t+3}] offset:{off + HCP}")
            for i in range(4): k(f"v_mov_b32 v{t+4+i}, v{w+1+i}")
            k(f"ds_write_b128 v236, v[{t+4}:{t+7}] offset:{off + 2*HCP}")
            for i in range(4): k(f"v_alignbyte_b32 v{t+8+i}, v{w+i+2}, v{w+i+1}, 2")
            k(f"ds_write_b128 v236, v[{t+8}:{t+11}] offset:{off + 3*HCP}")
    k(f"""
    s_lshl_b32 s6, s2, {FLS}
    s_add_u32 s6, s6, {WS_FL}
    s_lshl_b32 s7, s41, {4+FLS}
    s_add_u32 s7, s7, {WS_FL}
    """)
    k.wait_vm("kts")
    k(f"""
    v_readfirstlane_b32 s{S_NONCE}, v184
    v_readfirstlane_b32 s{S_NONCE+1}, v185
    s_barrier
    """)
    k.stamp(2)
    lw, lg = k.newlabel("Lcw"), k.newlabel("Lcg")
    k(f"""
    s_cmp_lg_u32 s{S_WAVE}, 0
    s_cbranch_scc1 {lw}
    s_cmp_lg_u32 s{S_NONCE}, 0
    s_cbranch_scc1 {lg}
    """)
    nonce_get(k, 16, endlbl)
    k(f"{lg}:")
    flag_set(k, 16, 6)
    k(f"{lw}:")
    k("s_waitcnt vmcnt(0)")
    hc_build()
    lw = k.newlabel("Lcw")
    k(f"""
    s_lshl_b32 s3, s2, 14
    s_add_u32 s36, s3, {WS_KT}
    s_cmp_lg_u32 s{S_WAVE}, 0
    s_cbranch_scc1 {lw}
    """)
    flag_wait(k, 16, 235, 7, 16, endlbl)
    k(f"{lw}:")
    k("s_barrier")
    k.stamp(3)
    k.vm = []
    for i in range(4):
        k(f"buffer_load_dwordx4 v[{208+4*i}:{211+4*i}], v3, s[24:27], s36 offen sc1", tag=("kt", i))
        if i < 3: k("s_add_u32 s36, s36, 4096")
    ACC = 32
    def bufA(p, b): return 64 + 64 * p + 4 * b
    def bufB(p, a): return 96 + 64 * p + 4 * a
    def rdA(r, x):
        a = bufA(r & 1, x)
        return [f"ds_read_b64 v[{a}:{a+1}], v228 offset:{512*x + 64*r}", f"ds_read_b64 v[{a+2}:{a+3}], v228 offset:{512*x + 64*r + 8}"]
    def rdB(r, x):
        b = bufB(r & 1, x)
        return [f"ds_read_b128 v[{b}:{b+3}], v229 offset:{512*(7-x) + 64*r}"]
    k("s_waitcnt lgkmcnt(0)")
    for x in range(8):
        for rd in rdA(0, x): k(rd)
    for i in range(4):
        k.wait_vm(("kt", i))
        for e in range(2):
            k(f"ds_write_b64 v{230 + (i>>1)}, v[{208+4*i+2*e}:{209+4*i+2*e}] offset:{e*CP + 2048*(1-(i&1))}")
    k("s_waitcnt lgkmcnt(0)\ns_barrier")
    k.stamp(4)
    if CLK and k.stb: k(f"s_memtime s[{k.stb+2}:{k.stb+3}]")
    k("s_waitcnt lgkmcnt(0)")
    pairs = sorted([(b, a) for b in range(8) for a in range(8) if a + b <= 7], key=lambda t: (max(t), t))
    pairs0 = sorted([(b, a) for b in list(range(8)) + ["D"] for a in range(8) if b == "D" or a + b <= 7], key=lambda t: t[1])
    for x in range(8):
        for rd in rdB(0, x): k(rd, tag=("r", 0, x))
    started = set()
    NR = 8
    for r in range(NR):
        nxt = []
        if r < NR - 1:
            for x in range(8): nxt += rdA(r + 1, x) + rdB(r + 1, x)
        p = r & 1
        plist = pairs0 if r == 0 else pairs
        for n, (b, a) in enumerate(plist):
            if r == 0:
                k.wait_lg(("r", 0, a))
            elif n == 0:
                k("s_waitcnt lgkmcnt(0)")
            i = a + b if b != "D" else a
            c = f"v[{ACC+4*i}:{ACC+4*i+3}]" if i in started else "0"
            started.add(i)
            areg = bufA(p, b) if b != "D" else 224
            k(f"v_mfma_f32_16x16x32_bf16 v[{ACC+4*i}:{ACC+4*i+3}], v[{areg}:{areg+3}], v[{bufB(p,a)}:{bufB(p,a)+3}], {c}")
            if r == 0 and n == 8: k.wait_lg(("r", 0, 7))
            if nxt and (r > 0 or n >= 8): k(nxt.pop(0), tag=("r", r + 1))
        while nxt: k(nxt.pop(0), tag=("r", r + 1))
        if r == 4:
            lw2 = k.newlabel("Lsw")
            k(f"s_cmp_lg_u32 s{S_WAVE}, 0\ns_cbranch_scc1 {lw2}")
            k(f"s_mov_b32 s3, {WS_FL + ((256 + 192) << FLS)}")
            flag_wait(k, 16, 235, 3, 64, endlbl)
            k(f"{lw2}:")
            k("s_barrier")
            k(f"s_mov_b32 s3, {WS_SQ}\ns_lshl_b32 s37, s2, 14\ns_add_u32 s37, s37, {WS_Q4}")
            for i in range(4):
                k(f"buffer_load_dwordx4 v[{208+4*i}:{211+4*i}], v3, s[24:27], s3 offen sc1", tag="sq")
                k(f"buffer_load_dwordx4 v[{192+4*i}:{195+4*i}], v3, s[24:27], s37 offen sc1", tag="q4")
                if i < 3: k("s_add_u32 s3, s3, 4096\ns_add_u32 s37, s37, 4096")
    k.stamp(5)
    if CLK and k.stb: k(f"s_memtime s[{k.stb+4}:{k.stb+5}]")
    k(f"""
    s_lshl_b32 s3, s2, 14
    s_add_u32 s36, s3, {WS_X1}
    s_add_u32 s37, s3, {WS_Y4}
    """)
    for t in range(8):
        a = ACC + 4 * t
        k(f"v_cvt_pk_bf16_f32 v{64+2*t}, v{a}, v{a+1}\nv_cvt_pk_bf16_f32 v{65+2*t}, v{a+2}, v{a+3}")
        k(f"ds_write_b64 v232, v[{64+2*t}:{65+2*t}] offset:{512*t}")
    k("s_waitcnt lgkmcnt(0)\ns_barrier")
    for i in range(4):
        for c in range(4): k(f"ds_read_b32 v{96+4*i+c}, v{233 if c < 2 else 234} offset:{(c&1)*CP + 1024*i}", tag=("ys", i))
    k("s_waitcnt vmcnt(0)")
    for i in range(4):
        Y = 96 + 4 * i; Q = 192 + 4 * i; S = 208 + 4 * i
        ox = 128 + 8 * i; oy = ox + 4
        for tk in range(2):
            for c in range(4):
                unpack(k, 84 + c, Q + 2 * tk + (c >> 1), c & 1)
            for c in range(4):
                k(f"v_fma_f32 v{88+c}, v{84+c}, v{S+2*tk+1}, -v{S+2*tk}")
            k.wait_lg(("ys", i))
            for c in range(4):
                unpack(k, 80 + c, Y + c, tk)
            for c in range(4):
                k(f"v_fma_f32 v{88+c}, v{88+c}, v{80+c}, v{84+c}")
            k(f"v_cvt_pk_bf16_f32 v{ox+2*tk}, v88, v89\nv_cvt_pk_bf16_f32 v{ox+2*tk+1}, v90, v91")
        k(f"buffer_store_dwordx4 v[{ox}:{ox+3}], v3, s[24:27], s36 offen{STF}")
        if i < 3: k("s_add_u32 s36, s36, 4096")
    for i in range(4):
        Y = 96 + 4 * i; oy = 128 + 8 * i + 4
        for tk in range(2):
            sel = "s51" if tk else "s50"
            k(f"v_perm_b32 v{oy+2*tk}, v{Y+1}, v{Y}, {sel}\nv_perm_b32 v{oy+2*tk+1}, v{Y+3}, v{Y+2}, {sel}")
        k(f"buffer_store_dwordx4 v[{oy}:{oy+3}], v3, s[24:27], s37 offen{STF}")
        if i < 3: k("s_add_u32 s37, s37, 4096")
    k.stamp(6)

def transp_lds(k, src, offs):
    for ci in range(8):
        sel = "s51" if ci & 1 else "s50"
        o = 192 + 4 * ci
        for e in range(4):
            k(f"v_perm_b32 v{o+e}, v{src+4*(2*e+1)+(ci>>1)}, v{src+4*(2*e)+(ci>>1)}, {sel}")
        av, off = offs[ci]
        k(f"ds_write_b128 v{av}, v[{o}:{o+3}] offset:{off}")

QTP = 272
FRP = 1040
def helper_role(k, endlbl):
    lns, lpk, lw2, lg = [k.newlabel("Lh") for _ in range(4)]
    prologue2(k)
    k(f"""
    s_sub_u32 s41, s2, 160                  ; bw
    s_lshl_b32 s42, s41, 2
    s_add_u32 s42, s42, s{S_WAVE}           ; Wv
    v_and_b32 v8, 15, v2
    v_lshrrev_b32 v9, 4, v2                 ; kq
    v_lshlrev_b32 v238, 4, v2                ; lane*16
    s_mul_i32 s45, s{S_WAVE}, {16*FRP}
    v_add_u32 v239, s45, v238
    v_mov_b32 v237, 0
    s_lshl_b32 s6, s41, {FLS}
    s_add_u32 s6, s6, {WS_FL}
    s_waitcnt lgkmcnt(0)
    """)
    if HWAIT:
        lhw = k.newlabel("Lhw")
        k(f"s_cmp_lg_u32 s{S_WAVE}, 0\ns_cbranch_scc1 {lhw}")
        nonce_get(k, 180, endlbl)
        flag_wait(k, 180, 237, 6, 1, endlbl)
        k(f"{lhw}:\ns_barrier")
    k(f"""
    s_cmp_lt_u32 s41, 32
    s_cbranch_scc1 {lns}
    """)
    srd(k, 16, 64, 65, NB)
    k(f"""
    s_sub_u32 s3, s42, 128
    s_lshl_b32 s3, s3, 3
    v_lshrrev_b32 v7, 3, v2
    v_add_u32 v4, s3, v7                    ; row
    v_mul_u32_u24 v5, 1280, v4
    v_and_b32 v6, 7, v2                     ; part
    v_lshl_add_u32 v5, v6, 4, v5
    """)
    for i in range(10): k(f"buffer_load_dwordx4 v[{128+4*i}:{131+4*i}], v5, s[16:19], 0 offen offset:{128*i}", tag=("q", i))
    k(f"""
    v_lshrrev_b32 v10, 3, v0
    v_lshlrev_b32 v10, 3, v10
    v_mul_u32_u24 v11, {2*QTP}, v6
    v_add_u32 v10, v10, v11
    s_mov_b32 s3, 0x3f803f80
    v_mov_b32 v176, 0
    v_mov_b32 v177, 0
    v_mov_b32 v178, 0
    v_mov_b32 v179, 0
    """)
    for i in range(10):
        k.wait_vm(("q", i))
        for e in range(2):
            k(f"ds_write_b64 v10, v[{128+4*i+2*e}:{129+4*i+2*e}] offset:{(16*i+e)*QTP}")
        for d in range(4):
            r = 128 + 4 * i + d
            k(f"v_dot2_f32_bf16 v{176+2*(d&1)}, v{r}, s3, v{176+2*(d&1)}")
            k(f"v_dot2_f32_bf16 v{177+2*(d&1)}, v{r}, v{r}, v{177+2*(d&1)}")
    k.stamp(1)
    k(f"buffer_load_dwordx2 v[184:185], off, s[{S_DBG}:{S_DBG+3}], 0 sc1")
    k("v_add_f32 v176, v176, v178\nv_add_f32 v177, v177, v179")
    for mod in ("quad_perm:[1,0,3,2]", "quad_perm:[2,3,0,1]", "row_half_mirror"):
        k(f"v_add_f32_dpp v176, v176, v176 {mod} row_mask:0xf bank_mask:0xf")
        k(f"v_add_f32_dpp v177, v177, v177 {mod} row_mask:0xf bank_mask:0xf")
    ln_scalars(k, 176, 177, 178)
    k(f"""
    v_mul_f32 v176, v176, v177
    v_lshlrev_b32 v4, 3, v4
    s_mov_b32 s3, {WS_SQ}
    s_mov_b32 exec_lo, 0x01010101
    s_mov_b32 exec_hi, 0x01010101
    buffer_store_dwordx2 v[176:177], v4, s[24:27], s3 offen sc1
    s_mov_b64 exec, -1
    s_lshl_b32 s3, s{S_WAVE}, 2
    v_add_u32 v11, s3, v9
    v_mul_u32_u24 v12, {QTP}, v11
    v_lshl_add_u32 v12, v8, 4, v12
    v_lshlrev_b32 v13, 14, v11
    v_lshl_add_u32 v13, v8, 4, v13
    s_sub_u32 s3, s41, 32
    s_lshl_b32 s3, s3, 8
    s_add_u32 s3, s3, {WS_Q4}
    s_waitcnt lgkmcnt(0)
    s_barrier
    """)
    for i in range(10): k(f"ds_read_b128 v[{128+4*i}:{131+4*i}], v12 offset:{16*i*QTP}", tag=("qr", i))
    for i in range(10):
        k.wait_lg(("qr", i))
        k(f"buffer_store_dwordx4 v[{128+4*i}:{131+4*i}], v13, s[24:27], s3 offen sc1")
        if i < 9: k(f"s_add_u32 s3, s3, {16*16384}")
    k(f"""
    s_waitcnt vmcnt(0)
    v_readfirstlane_b32 s{S_NONCE}, v184
    v_readfirstlane_b32 s{S_NONCE+1}, v185
    s_barrier
    s_cmp_lg_u32 s{S_WAVE}, 0
    s_cbranch_scc1 {lpk}
    s_cmp_lg_u32 s{S_NONCE}, 0
    s_cbranch_scc1 {lg}
    """)
    nonce_get(k, 180, endlbl)
    k(f"{lg}:\ns_lshl_b32 s3, s2, {FLS}\ns_add_u32 s3, s3, {WS_FL + (256 << FLS)}")
    flag_set(k, 180, 3)
    k(f"""
    s_branch {lpk}
    {lns}:
    v_mov_b32 v192, -1
    v_mov_b32 v193, -1
    v_mov_b32 v194, -1
    v_mov_b32 v195, -1
    s_lshl_b32 s3, s41, 13
    s_add_u32 s3, s3, {WS_ST}
    s_add_u32 s4, s3, 4096
    buffer_store_dwordx4 v[192:195], v3, s[24:27], s3 offen{STF}
    buffer_store_dwordx4 v[192:195], v3, s[24:27], s4 offen{STF}
    s_waitcnt vmcnt(0)
    {lpk}:
    s_nop 4
    """)
    k.stamp(2)
    k.vm = []; k.lg = []
    srd(k, 12, 82, 83, 1536 * 640 * 2)
    k(f"""
    s_lshr_b32 s46, s42, 3                  ; kstep
    s_and_b32 s47, s42, 7                   ; ct2
    s_mul_i32 s3, s46, 171
    s_lshr_b32 s3, s3, 9                    ; ct
    s_mul_i32 s4, s3, 3
    s_sub_u32 s4, s46, s4                   ; g
    s_mul_i32 s3, s3, 96
    s_mul_i32 s5, s4, 24
    s_add_u32 s5, s5, s3
    s_lshl_b32 s6, s4, 3
    s_add_u32 s6, s6, s3
    s_add_u32 s6, s6, 72
    s_mul_i32 s5, s5, 1280
    s_mul_i32 s6, s6, 1280
    s_mul_i32 s7, s47, 160
    s_add_u32 s5, s5, s7
    s_add_u32 s6, s6, s7
    s_add_u32 s48, s5, 10240
    s_add_u32 s49, s5, 20480
    v_min_u32 v14, 9, v8
    v_mul_u32_u24 v15, 2560, v9
    v_lshl_add_u32 v15, v14, 4, v15
    """)
    R = 96
    k(f"""
    buffer_load_dwordx4 v[{R}:{R+3}], v15, s[12:15], s5 offen
    buffer_load_dwordx4 v[{R+4}:{R+7}], v15, s[12:15], s5 offen offset:1280
    buffer_load_dwordx4 v[{R+8}:{R+11}], v15, s[12:15], s48 offen
    buffer_load_dwordx4 v[{R+12}:{R+15}], v15, s[12:15], s48 offen offset:1280
    buffer_load_dwordx4 v[{R+16}:{R+19}], v15, s[12:15], s49 offen
    buffer_load_dwordx4 v[{R+20}:{R+23}], v15, s[12:15], s49 offen offset:1280
    buffer_load_dwordx4 v[{R+24}:{R+27}], v15, s[12:15], s6 offen
    buffer_load_dwordx4 v[{R+28}:{R+31}], v15, s[12:15], s6 offen offset:1280
    s_cmp_ge_u32 s41, 60
    s_cbranch_scc1 {lw2}
    """)
    srd(k, 8, 78, 79, 640 * 1536 * 2); srd(k, 16, 80, 81, 640 * 1536 * 2)
    k(f"""
    s_mul_i32 s52, s42, 171
    s_lshr_b32 s52, s52, 11
    s_mul_i32 s3, s52, 12
    s_sub_u32 s53, s42, s3                  ; fg
    s_mul_i32 s7, s52, {32*3072}
    s_lshl_b32 s3, s53, 8
    s_add_u32 s7, s7, s3
    v_mul_u32_u24 v16, {4*3072}, v9
    v_lshl_add_u32 v16, v8, 4, v16
    """)
    for j in range(8):
        k(f"buffer_load_dwordx4 v[{32+4*j}:{35+4*j}], v16, s[8:11], s7 offen")
        k(f"buffer_load_dwordx4 v[{64+4*j}:{67+4*j}], v16, s[16:19], s7 offen")
        if j < 7: k(f"s_add_u32 s7, s7, {3072 * (13 if j == 3 else 1)}")
    k(f"""
    v_mul_u32_u24 v17, {FRP}, v8
    v_lshl_add_u32 v17, v9, 8, v17
    v_add_u32 v17, s45, v17
    s_waitcnt vmcnt(0)
    """)
    transp_lds(k, 32, [(17, 64 * (fi >> 1) + 16 * (fi & 1)) for fi in range(8)])
    transp_lds(k, 64, [(17, 64 * (fi >> 1) + 16 * (fi & 1) + 32) for fi in range(8)])
    k("s_waitcnt lgkmcnt(0)")
    for f in range(16): k(f"ds_read_b128 v[{32+4*f}:{35+4*f}], v239 offset:{f*FRP}", tag=("f", f))
    k(f"s_lshl_b32 s54, s53, 4\ns_mul_i32 s55, s52, 3072\ns_add_u32 s55, s55, {WS_W1P}")
    for f in range(16):
        k(f"""
        s_add_u32 s3, s54, {f}                  ; fo
        s_mul_i32 s4, s3, 171
        s_lshr_b32 s4, s4, 9                    ; cw
        s_mul_i32 s5, s4, {57*1024}
        s_lshl_b32 s3, s3, 10
        s_add_u32 s3, s3, s5
        s_add_u32 s3, s3, s55
        """)
        k.wait_lg(("f", f))
        k(f"buffer_store_dwordx4 v[{32+4*f}:{35+4*f}], v238, s[24:27], s3 offen{STF}")
    k(f"""
    {lw2}:
    s_nop 1
    v_lshrrev_b32 v19, 2, v14
    v_mul_u32_u24 v19, {2*FRP}, v19
    v_and_b32 v20, 3, v14
    v_cmp_le_u32 vcc, 8, v14
    v_lshlrev_b32 v21, 6, v20
    v_lshlrev_b32 v22, 7, v20
    v_cndmask_b32 v21, v21, v22, vcc
    v_add_u32 v19, v19, v21
    v_mov_b32 v21, {FRP}
    v_cndmask_b32 v21, v21, 64, vcc
    v_lshl_add_u32 v19, v9, 8, v19
    v_add_u32 v24, s45, v19
    v_add_u32 v25, v24, v21
    s_mul_i32 s3, s47, 48
    s_add_u32 s3, s3, s46
    s_mul_i32 s3, s3, 5120
    s_add_u32 s3, s3, {WS_W2P}
    s_add_u32 s4, s3, 4096
    s_waitcnt vmcnt(0) lgkmcnt(0)
    """)
    transp_lds(k, R, [(24 if di < 4 else 25, 16 * (di & 3)) for di in range(8)])
    k("s_waitcnt lgkmcnt(0)")
    for f in range(5): k(f"ds_read_b128 v[{32+4*f}:{35+4*f}], v239 offset:{f*FRP}", tag=("g", f))
    for f in range(5):
        k.wait_lg(("g", f))
        if f < 4: k(f"buffer_store_dwordx4 v[{32+4*f}:{35+4*f}], v238, s[24:27], s3 offen offset:{1024*f}{STF}")
        else: k(f"buffer_store_dwordx4 v[{32+4*f}:{35+4*f}], v238, s[24:27], s4 offen{STF}")
    k.stamp(6)

def gen_k01(dbg=False, code_end="Lk01_end", code_bytes=20000):
    k = K("k01_kernel", 256, 256, lds=4 * CP, vgpr=256, sgpr=102)
    k.stb = 84 if dbg else None
    prologue(k, "Lk01_end")
    code_prefetch(k, "k01_kernel", code_end, code_bytes, 240)
    k("s_cmp_ge_u32 s2, 160\ns_cbranch_scc1 Lk01_help")
    conv_role(k, "Lk01_end")
    k("s_branch Lk01_fin")
    k.hist = []; k.vm = []; k.lg = []
    k("Lk01_help:")
    helper_role(k, "Lk01_end")
    k("Lk01_fin:")
    if dbg:
        k(f"s_lshl_b32 s62, s2, 5\ns_add_u32 s62, s62, {WS_DBG}")
        k.stamp_flush(24, 62)
    k("Lk01_end:")
    return k

if __name__ == "__main__":
    import sys
    CLK = len(sys.argv) > 2
    k = gen_k01(len(sys.argv) > 1)
    open("k01.s", "w").write(build([k], [k]))
    print("k01", k.ninstr, k.nnop)
```

```python
from gen_common import *
from gen_k01 import prologue, prologue2, code_prefetch

TS = 81920
V_LANE8 = (4, 5, 6)
V_L16 = 7
V_DMA = 8
V_FLG = 9
V_N, V_Q = 10, 11
V_X4P = 12
V_X4S = 13
V_RDP, V_RDS = 14, 15
V_OUP, V_OUS = 16, 17
V_STW, V_STR = 18, 19
V_CS = 20
V_XR = 32
V_Y = 44
V_ST = 56
V_TMP = 68
V_ACC = 96
V_TB = 192
V_H = 96
V_A2 = 192
LOG2E = 1.4426950408889634

def lds_addr(off):
    return V_LANE8[off >> 16], off & 0xffff

def gen_k2(dbg=False, own_prefetch=True):
    k = K("k2_kernel", 256, 256, lds=2 * TS, vgpr=256, agpr=256, sgpr=102)
    k.stb = 84 if dbg else None
    END = "Lk2_end"
    prologue(k, END)
    k("s_load_dwordx2 s[16:17], s[0:1], 80")
    if own_prefetch: code_prefetch(k, "k2_kernel", "Lk2_end", 60000, 240)
    prologue2(k)
    k(f"""
    s_and_b32 s3, s2, 7                     ; x
    s_lshr_b32 s4, s2, 3                    ; r
    s_lshr_b32 s41, s3, 2
    s_lshl_b32 s41, s41, 3
    s_and_b32 s5, s4, 7
    s_add_u32 s41, s41, s5                  ; cl
    s_and_b32 s42, s3, 3
    s_lshl_b32 s42, s42, 2
    s_lshr_b32 s5, s4, 3
    s_add_u32 s42, s42, s5
    s_lshr_b32 s43, s42, 3                  ; rh
    s_and_b32 s44, s42, 7                   ; ct2
    s_lshl_b32 s45, s41, 4
    s_add_u32 s45, s45, s42                 ; L = cl*16+i
    s_lshl_b32 s46, s42, 2
    s_add_u32 s46, s46, s{S_WAVE}
    s_mul_i32 s46, s46, {60*1024}
    s_add_u32 s46, s46, {WS_W1P}
    s_mul_i32 s47, s44, 48
    s_mul_i32 s5, s{S_WAVE}, 12
    s_add_u32 s47, s47, s5
    s_mul_i32 s47, s47, 5120
    s_add_u32 s47, s47, {WS_W2P}
    s_lshl_b32 s48, s41, 10
    s_lshl_b32 s5, s{S_WAVE}, 7
    s_add_u32 s48, s48, s5
    s_lshl_b32 s49, s{S_WAVE}, 10
    v_lshlrev_b32 v{V_LANE8[0]}, 3, v2
    v_add_u32 v{V_LANE8[1]}, 0x10000, v{V_LANE8[0]}
    v_add_u32 v{V_LANE8[2]}, 0x20000, v{V_LANE8[0]}
    v_lshlrev_b32 v{V_L16}, 4, v2
    v_lshrrev_b32 v{V_DMA}, 3, v2
    v_lshlrev_b32 v{V_DMA}, 14, v{V_DMA}
    v_and_b32 v{V_TMP}, 7, v2
    v_lshl_add_u32 v{V_DMA}, v{V_TMP}, 4, v{V_DMA}
    s_waitcnt lgkmcnt(0)
    s_mov_b32 s18, {NB}
    s_mov_b32 s19, 0x20000
    """)
    nonce_publish(k, V_TMP)
    k.vm = []

    def w1_load(ks):
        for mt in range(3):
            a = 12 * ks + 4 * mt
            k(f"buffer_load_dwordx4 a[{a}:{a+3}], v{V_L16}, s[24:27], s62 offen offset:{1024*mt}", tag=("w1", ks))
    def w1_load_at(ks):
        k(f"s_add_u32 s62, s46, {3072*ks}"); w1_load(ks)
    def w2_load_frag(f):
        if f % 4 == 0: k(f"s_add_u32 s63, s47, {1024*f}")
        k(f"buffer_load_dwordx4 a[{4*f}:{4*f+3}], v{V_L16}, s[24:27], s63 offen offset:{1024*(f%4)}", tag=("w2", f))
    def tok_dma(X, s, ks, sc=" sc1"):
        k(f"s_add_u32 s3, s48, {X + ks*8*16384 + s*512}\ns_add_u32 m0, s49, {s*TS + ks*4096}")
        k(f"buffer_load_dwordx4 v{V_DMA}, s[24:27], s3 offen{sc} lds", tag=("tok", s, ks))

    NPRE = 12
    for ks in range(NPRE):
        w1_load_at(ks); tok_dma(WS_X1, 0, ks, "");
    k(f"""
    v_lshlrev_b32 v{V_FLG}, {FLS}, v2
    v_and_b32 v{V_N}, 15, v2
    v_lshrrev_b32 v{V_Q}, 4, v2
    s_lshl_b32 s52, s41, 3
    s_lshl_b32 s5, s43, 1
    s_add_u32 s52, s52, s5
    s_and_b32 s5, s{S_WAVE}, 1
    s_add_u32 s53, s52, s5                  ; T (stream 0)
    s_lshr_b32 s54, s{S_WAVE}, 1            ; P
    s_mul_i32 s5, s44, 20
    s_lshl_b32 s6, s54, 3
    s_add_u32 s6, s6, s5
    v_lshl_add_u32 v{V_TMP}, v{V_Q}, 1, s6
    v_lshlrev_b32 v{V_X4P}, 14, v{V_TMP}
    s_lshl_b32 s7, s53, 4
    v_add_u32 v{V_TMP+1}, s7, v{V_N}        ; token
    v_lshl_add_u32 v{V_X4P}, v{V_TMP+1}, 3, v{V_X4P}
    v_mul_u32_u24 v{V_OUP}, 1280, v{V_TMP+1}
    v_mov_b32 v{V_OUS}, v{V_OUP}
    v_lshl_add_u32 v{V_OUP}, v{V_TMP}, 3, v{V_OUP}
    s_add_u32 s5, s5, 16
    v_add_u32 v{V_TMP}, s5, v{V_Q}
    v_lshlrev_b32 v{V_X4S}, 14, v{V_TMP}
    v_lshl_add_u32 v{V_X4S}, v{V_TMP+1}, 3, v{V_X4S}
    v_lshl_add_u32 v{V_OUS}, v{V_TMP}, 3, v{V_OUS}
    s_and_b32 s5, s{S_WAVE}, 1
    s_mul_i32 s5, s5, 5120
    s_lshl_b32 s6, s54, 11
    s_add_u32 s6, s6, s5
    v_add_u32 v{V_RDP}, s6, v{V_L16}
    s_add_u32 s5, s5, 4096
    v_add_u32 v{V_RDS}, s5, v{V_L16}
    s_lshl_b32 s5, s44, 1
    s_add_u32 s5, s5, s54
    s_lshl_b32 s5, s5, 7
    s_lshl_b32 s6, s53, 11
    s_add_u32 s5, s5, s6
    v_lshlrev_b32 v{V_TMP}, 3, v{V_N}
    v_add_u32 v{V_STW}, s5, v{V_TMP}
    v_lshl_add_u32 v{V_TMP}, v{V_Q}, 9, v{V_TMP}
    v_add_u32 v{V_STR}, s6, v{V_TMP}
    s_mov_b32 s55, 0x3f803f80
    v_mov_b32 v{V_TB+32}, s55
    v_mov_b32 v{V_TB+33}, s55
    v_mov_b32 v{V_TB+34}, s55
    v_mov_b32 v{V_TB+35}, s55
    """)
    ONES = V_TB + 32

    def flag_addr(phase, reg_idx_s, dst):
        k(f"s_lshl_b32 s{dst}, s{reg_idx_s}, {FLS}\ns_add_u32 s{dst}, s{dst}, {WS_FL + ((2 + phase) * 256 << FLS)}")
    def signal(phase, first=False):
        l = k.newlabel("Lsg")
        k(f"s_waitcnt vmcnt(0)\ns_barrier\ns_cmp_lg_u32 s{S_WAVE}, 0\ns_cbranch_scc1 {l}")
        if first: nonce_get(k, V_TMP, END)
        flag_addr(phase, 45, 3)
        flag_set(k, V_TMP, 3)
        k(f"{l}:")
        k.vm = []
    def await_(phase):
        l = k.newlabel("Law")
        k(f"s_cmp_lg_u32 s{S_WAVE}, 0\ns_cbranch_scc1 {l}")
        k(f"s_lshl_b32 s3, s41, {4+FLS}\ns_add_u32 s3, s3, {WS_FL + ((2 + phase) * 256 << FLS)}")
        sv = list(k.vm)
        flag_wait(k, V_TMP, V_FLG, 3, 16, END)
        k.vm = sv
        k(f"{l}:\ns_barrier")

    def frag_reads(s, ks, p):
        out = []
        for tt in range(4):
            for hf in range(2):
                v, off = lds_addr(s * TS + ks * 4096 + tt * 1024 + hf * 512)
                r = V_TB + 16 * p + 4 * tt + 2 * hf
                out.append(f"ds_read_b64 v[{r}:{r+1}], v{v} offset:{off}")
        return out

    def g1(s, layer, hooks=None, chunk=5):
        acc = V_ACC + 48 * s
        hooks = hooks or {}
        S1, S2 = V_TMP + 8, V_TMP + 9
        k(f"v_mov_b32 v{S1}, 0\nv_mov_b32 v{S2}, 0\nv_mov_b32 v{S1+2}, 0\nv_mov_b32 v{S2+2}, 0")
        k(f"v_add_u32 v{V_TMP+12}, s49, v{V_LANE8[0]}\nv_add_u32 v{V_TMP+13}, s49, v{V_LANE8[1]}\nv_add_u32 v{V_TMP+14}, s49, v{V_LANE8[2]}")
        def sync_chunk(c):
            last = min(20, (c + 1) * chunk) - 1
            k.wait_vm(("tok", s, last))
            k("s_barrier")
        sync_chunk(0)
        for rd in frag_reads(s, 0, 0): k(rd, tag=("fr", 0))
        for ks in range(20):
            p = ks & 1
            if ks + 1 < 20 and (ks + 1) % chunk == 0: sync_chunk((ks + 1) // chunk)
            nxt = frag_reads(s, ks + 1, p ^ 1) if ks + 1 < 20 else []
            off = s * TS + ks * 4096
            sr = [f"ds_read_b64 v[{V_TMP+16}:{V_TMP+17}], v{V_TMP+12+(off>>16)} offset:{off&0xffff}",
                  f"ds_read_b64 v[{V_TMP+18}:{V_TMP+19}], v{V_TMP+12+((off+512)>>16)} offset:{(off+512)&0xffff}"]
            k.wait_vm(("w1", ks))
            k.wait_lg(("fr", ks))
            for x in sr: k(x, tag=("sr", ks))
            n = 0
            for tt in range(4):
                for mt in range(3):
                    a = acc + 12 * tt + 4 * mt
                    c = "0" if ks == 0 else f"v[{a}:{a+3}]"
                    b = V_TB + 16 * p + 4 * tt
                    k(f"v_mfma_f32_16x16x32_bf16 v[{a}:{a+3}], a[{12*ks+4*mt}:{12*ks+4*mt+3}], v[{b}:{b+3}], {c}")
                    if nxt: k(nxt.pop(0), tag=("fr", ks + 1))
                    n += 1
                    if n == 8: k.wait_lg(("sr", ks))
                    if n >= 9:
                        d = V_TMP + 16 + (n - 9)
                        o = 2 * (n & 1)
                        k(f"v_dot2_f32_bf16 v{S1+o}, v{d}, s55, v{S1+o}\nv_dot2_f32_bf16 v{S2+o}, v{d}, v{d}, v{S2+o}")
            if layer == 0 and s == 0:
                for mt in range(3):
                    a = V_CS + 4 * mt
                    c = "0" if ks == 0 else f"v[{a}:{a+3}]"
                    k(f"v_mfma_f32_16x16x32_bf16 v[{a}:{a+3}], a[{12*ks+4*mt}:{12*ks+4*mt+3}], v[{ONES}:{ONES+3}], {c}")
            if ks in hooks: hooks[ks]()
        k(f"v_add_f32 v{S1}, v{S1}, v{S1+2}\nv_add_f32 v{S2}, v{S2}, v{S2+2}")
        xor_reduce([S1, S2], V_TMP + 16)
        ln_scalars(k, S1, S2, V_TMP + 16)
        k(f"""
        s_lshl_b32 s3, s{S_WAVE}, 7
        s_add_u32 s3, s3, {s*TS + 16384}
        v_lshl_add_u32 v{V_TMP+16}, v{V_N}, 3, s3
        s_waitcnt lgkmcnt(0)
        s_barrier
        ds_write_b64 v{V_TMP+16}, v[{S1}:{S2}]
        v_lshlrev_b32 v{V_TMP+17}, 3, v{V_N}
        v_add_u32 v{V_TMP+17}, {s*TS + 16384}, v{V_TMP+17}
        s_waitcnt lgkmcnt(0)
        s_barrier
        """)
        for tt in range(4): k(f"ds_read_b64 v[{V_TMP+2*tt}:{V_TMP+2*tt+1}], v{V_TMP+17} offset:{128*tt}")
        k("s_waitcnt lgkmcnt(0)")
        import struct
        nl2e = hex(struct.unpack("<I", struct.pack("<f", -LOG2E))[0])
        for tt in range(4):
            m, rs = V_TMP + 2 * tt, V_TMP + 2 * tt + 1
            k(f"v_sub_f32 v{V_ST+3*tt}, 0, v{m}\nv_mul_f32 v{V_ST+3*tt+1}, {nl2e}, v{rs}\nv_mul_f32 v{V_ST+3*tt+2}, v{rs}, v{rs}")

    def xor_reduce(regs, t):
        for op in ("v_permlane16_swap_b32", "v_permlane32_swap_b32"):
            for i, r in enumerate(regs): k(f"v_mov_b32 v{t+i}, v{r}")
            for i, r in enumerate(regs): k(f"{op} v{r}, v{t+i}")
            for i, r in enumerate(regs): k(f"v_add_f32 v{r}, v{r}, v{t+i}")

    def g1_epilogue(s, H):
        acc = V_ACC + 48 * s
        k(f"v_add_u32 v{V_TMP+20}, s49, v{V_L16}\nv_add_u32 v{V_TMP+20}, {s*TS}, v{V_TMP+20}")
        for tt in range(4):
            nm, c1, r2 = V_ST + 3 * tt, V_ST + 3 * tt + 1, V_ST + 3 * tt + 2
            o = V_TMP + 12 + 4 * (tt & 1)
            for mt in range(3):
                a = acc + 12 * tt + 4 * mt; cs = V_CS + 4 * mt; t = V_TMP
                for i in range(4): k(f"v_fma_f32 v{a+i}, v{nm}, v{cs+i}, v{a+i}")
                for i in range(2): k(f"v_mul_f32 v{t+i}, v{a+i}, v{c1}")
                for i in range(2): k(f"v_exp_f32 v{t+i}, v{t+i}")
                for i in range(2): k(f"v_mul_f32 v{t+2+i}, v{a+i}, v{a+2+i}")
                for i in range(2): k(f"v_add_f32 v{t+i}, 1.0, v{t+i}")
                for i in range(2): k(f"v_rcp_f32 v{t+i}, v{t+i}")
                for i in range(2): k(f"v_mul_f32 v{t+2+i}, v{t+2+i}, v{r2}")
                for i in range(2): k(f"v_mul_f32 v{t+2+i}, v{t+2+i}, v{t+i}")
                k(f"v_cvt_pk_bf16_f32 v{o+mt}, v{t+2}, v{t+3}")
            k(f"ds_write_b96 v{V_TMP+20}, v[{o}:{o+2}] offset:{4096*tt}")
        k(f"""
        s_lshl_b32 s3, s{S_WAVE}, 12
        s_add_u32 s3, s3, {s*TS}
        v_add_u32 v{V_TMP+21}, s3, v{V_L16}
        s_lshl_b32 s4, s41, 3
        s_add_u32 s4, s4, s{S_WAVE}
        s_mul_i32 s4, s4, {48*1024}
        s_mul_i32 s5, s42, 3072
        s_add_u32 s4, s4, s5
        s_add_u32 s4, s4, {H + 4*s*48*1024}
        s_waitcnt lgkmcnt(0)
        s_barrier
        """)
        for g in range(3):
            r = V_TMP + 4 * g
            k(f"ds_read_b128 v[{r}:{r+3}], v{V_TMP+21} offset:{1024*g}")
            k(f"ds_read_b32 v{r+3}, v{V_TMP+21} offset:{3072 + 4*g}", tag=("hs", g))
        for g in range(3):
            r = V_TMP + 4 * g
            k.wait_lg(("hs", g))
            k(f"buffer_store_dwordx4 v[{r}:{r+3}], v{V_L16}, s[24:27], s4 offen offset:{1024*g} sc1")

    def g2_loads(s, H):
        k(f"""
        s_mul_i32 s4, s52, {48*1024}
        s_mul_i32 s5, s{S_WAVE}, {12*1024}
        s_add_u32 s4, s4, s5
        s_add_u32 s4, s4, {H + 4*s*48*1024}
        s_add_u32 s5, s4, {48*1024}
        """)
        for ksl in range(12):
            for t2 in range(2):
                r = V_H + 8 * ksl + 4 * t2
                k(f"buffer_load_dwordx4 v[{r}:{r+3}], v{V_L16}, s[24:27], s{4+t2} offen offset:{1024*(ksl%4)} sc1", tag=("h", ksl))
            if ksl % 4 == 3 and ksl < 11: k("s_add_u32 s4, s4, 4096\ns_add_u32 s5, s5, 4096")

    def g2(s, hooks=None):
        hooks = hooks or {}
        for ksl in range(12):
            k.wait_vm(("w2", 5 * ksl + 4))
            k.wait_vm(("h", ksl))
            for t2 in range(2):
                for mt in range(5):
                    a = V_A2 + 20 * t2 + 4 * mt; w = 4 * (5 * ksl + mt); b = V_H + 8 * ksl + 4 * t2
                    c = "0" if ksl == 0 else f"v[{a}:{a+3}]"
                    k(f"v_mfma_f32_16x16x32_bf16 v[{a}:{a+3}], a[{w}:{w+3}], v[{b}:{b+3}], {c}")
            if ksl in hooks: hooks[ksl]()
        k(f"s_mul_i32 s3, s{S_WAVE}, 10240\ns_add_u32 s3, s3, {s*TS}\nv_add_u32 v{V_TMP}, s3, v{V_L16}")
        for t in range(10): k(f"ds_write_b128 v{V_TMP}, v[{V_A2+4*t}:{V_A2+4*t+3}] offset:{1024*t}")
        k(f"v_add_u32 v{V_TMP+1}, {s*TS}, v{V_RDP}\nv_add_u32 v{V_TMP+2}, {s*TS}, v{V_RDS}")
        k("s_waitcnt lgkmcnt(0)\ns_barrier")
        for j in range(3):
            for wp in range(4):
                r = V_H + 16 * j + 4 * wp
                av = V_TMP + 1 if j < 2 else V_TMP + 2
                k(f"ds_read_b128 v[{r}:{r+3}], v{av} offset:{10240*wp + (1024*j if j < 2 else 0)}", tag=("rd", j))
        for j in range(3):
            k.wait_lg(("rd", j))
            r = V_H + 16 * j
            for i in range(4):
                k(f"v_add_f32 v{r+i}, v{r+i}, v{r+4+i}\nv_add_f32 v{r+8+i}, v{r+8+i}, v{r+12+i}")
            for i in range(4): k(f"v_add_f32 v{r+i}, v{r+i}, v{r+8+i}")
        for j in range(3):
            r = V_H + 16 * j; xr = V_XR + 6 * s + 2 * j
            round2(k, r, r + 1, r + 4); round2(k, r + 2, r + 3, r + 5)
            for i in range(4): unpack(k, r + 8 + i, xr + (i >> 1), i & 1)
            for i in range(4): k(f"v_add_f32 v{r+i}, v{r+i}, v{r+8+i}")
            k(f"v_cvt_pk_bf16_f32 v{xr}, v{r}, v{r+1}\nv_cvt_pk_bf16_f32 v{xr+1}, v{r+2}, v{r+3}")

    def x4_loads(X, dst, sc=""):
        for s in range(2):
            k(f"s_mov_b32 s3, {X + s*512}\ns_mov_b32 s4, {X + s*512 + 16384}")
            r = dst + 6 * s
            k(f"buffer_load_dwordx2 v[{r}:{r+1}], v{V_X4P}, s[24:27], s3 offen{sc}", tag="x4")
            k(f"buffer_load_dwordx2 v[{r+2}:{r+3}], v{V_X4P}, s[24:27], s4 offen{sc}", tag="x4")
            k(f"buffer_load_dwordx2 v[{r+4}:{r+5}], v{V_X4S}, s[24:27], s3 offen{sc}", tag="x4")

    def g2_mid1(s):
        S1, S2 = V_TMP + 4, V_TMP + 5
        xr = V_XR + 6 * s
        k(f"v_mov_b32 v{S1}, 0\nv_mov_b32 v{S2}, 0\nv_mov_b32 v{S1+2}, 0\nv_mov_b32 v{S2+2}, 0")
        for d in range(4):
            k(f"v_dot2_f32_bf16 v{S1}, v{xr+d}, s55, v{S1}\nv_dot2_f32_bf16 v{S2}, v{xr+d}, v{xr+d}, v{S2}")
        for d in range(4, 6):
            k(f"v_dot2_f32_bf16 v{S1+2}, v{xr+d}, s55, v{S1+2}\nv_dot2_f32_bf16 v{S2+2}, v{xr+d}, v{xr+d}, v{S2+2}")
        k(f"""
        s_cmp_eq_u32 s54, 0
        s_cselect_b32 s3, 1.0, 0
        v_fma_f32 v{S1}, v{S1+2}, s3, v{S1}
        v_fma_f32 v{S2}, v{S2+2}, s3, v{S2}
        """)
        xor_reduce([S1, S2], V_TMP + 8)
        k(f"""
        v_min_u32 v{S1}, -2, v{S1}
        v_min_u32 v{S2}, -2, v{S2}
        s_mov_b32 s3, {WS_ST + s*4*2048}
        s_mov_b64 exec, 0xffff
        buffer_store_dwordx2 v[{S1}:{S2}], v{V_STW}, s[24:27], s3 offen sc1
        s_mov_b64 exec, -1
        """)

    def g2_mid2(s):
        l = k.newlabel("Lst")
        t = V_TMP
        k(f"s_mov_b32 s3, {WS_ST + s*4*2048}\n{l}:")
        for i in range(4): k(f"buffer_load_dwordx2 v[{t+2*i}:{t+2*i+1}], v{V_STR}, s[24:27], s3 offen offset:{128*i} sc1")
        k(f"""
        s_waitcnt vmcnt(0)
        v_max3_u32 v{t+8}, v{t}, v{t+1}, v{t+2}
        v_max3_u32 v{t+9}, v{t+3}, v{t+4}, v{t+5}
        v_max3_u32 v{t+8}, v{t+6}, v{t+7}, v{t+8}
        v_max_u32 v{t+8}, v{t+8}, v{t+9}
        s_sub_u32 s{S_SPIN}, s{S_SPIN}, 1
        s_cbranch_scc1 {END}
        v_cmp_eq_u32 vcc, -1, v{t+8}
        s_cbranch_vccnz {l}
        v_add_f32 v{t}, v{t}, v{t+2}
        v_add_f32 v{t+1}, v{t+1}, v{t+3}
        v_add_f32 v{t+4}, v{t+4}, v{t+6}
        v_add_f32 v{t+5}, v{t+5}, v{t+7}
        v_add_f32 v{t}, v{t}, v{t+4}
        v_add_f32 v{t+1}, v{t+1}, v{t+5}
        """)
        xor_reduce([t, t + 1], t + 2)
        ln_scalars(k, t, t + 1, t + 2)
        k(f"v_mul_f32 v{t}, v{t}, v{t+1}")
        for j in range(3):
            xr = V_XR + 6 * s + 2 * j; yr = V_Y + 6 * s + 2 * j
            for i in range(4):
                unpack(k, t + 4 + i, xr + (i >> 1), i & 1); unpack(k, t + 8 + i, yr + (i >> 1), i & 1)
            for i in range(4): k(f"v_fma_f32 v{t+12+i}, v{t+4+i}, v{t+1}, -v{t}")
            for i in range(4): k(f"v_fma_f32 v{t+12+i}, v{t+12+i}, v{t+8+i}, v{t+4+i}")
            k(f"v_cvt_pk_bf16_f32 v{xr}, v{t+12}, v{t+13}\nv_cvt_pk_bf16_f32 v{xr+1}, v{t+14}, v{t+15}")
        xr = V_XR + 6 * s
        l2 = k.newlabel("Lns")
        k(f"""
        s_mov_b32 s3, {WS_X3 + s*512}
        s_mov_b32 s4, {WS_X3 + s*512 + 16384}
        buffer_store_dwordx2 v[{xr}:{xr+1}], v{V_X4P}, s[24:27], s3 offen sc1
        buffer_store_dwordx2 v[{xr+2}:{xr+3}], v{V_X4P}, s[24:27], s4 offen sc1
        s_cmp_lg_u32 s54, 0
        s_cbranch_scc1 {l2}
        buffer_store_dwordx2 v[{xr+4}:{xr+5}], v{V_X4S}, s[24:27], s3 offen sc1
        {l2}:
        """)

    def out_store(s):
        xr = V_XR + 6 * s
        l2 = k.newlabel("Lno")
        k(f"""
        s_mov_b32 s3, {s*64*1280}
        buffer_store_dwordx4 v[{xr}:{xr+3}], v{V_OUP}, s[16:19], s3 offen
        s_cmp_lg_u32 s54, 0
        s_cbranch_scc1 {l2}
        buffer_store_dwordx2 v[{xr+4}:{xr+5}], v{V_OUS}, s[16:19], s3 offen
        {l2}:
        """)

    def hooksA0():
        h = {}
        for ks in range(20):
            def f(ks=ks):
                if ks + NPRE < 20:
                    w1_load_at(ks + NPRE); tok_dma(WS_X1, 0, ks + NPRE, "")
                if ks >= 0: tok_dma(WS_X1, 1, ks, "")
            h[ks] = f
        return h
    def hooks_w2():
        h = {}
        for ks in range(20):
            def f(ks=ks):
                for x in range(3): w2_load_frag(3 * ks + x)
            h[ks] = f
        return h
    def hooks_w1():
        h = {}
        for ksl in range(12):
            def f(ksl=ksl):
                lo = (20 * ksl) // 12; hi = (20 * (ksl + 1)) // 12
                for ks in range(lo, hi): w1_load_at(ks)
            h[ksl] = f
        return h
    for layer in range(2):
        H = WS_H1 if layer == 0 else WS_H2
        ph = 4 * layer
        if layer == 0:
            g1(0, 0, hooksA0())
            x4_loads(WS_X1, V_XR); x4_loads(WS_Y4, V_Y)
        else:
            g1(0, 1)
        k.stamp(1 + 3 * layer)
        g1_epilogue(0, H); signal(ph + 0, first=(layer == 0))
        if layer == 1:
            await_(3)
            for ks in range(20): tok_dma(WS_X3, 1, ks)
        g1(1, layer, hooks_w2())
        g1_epilogue(1, H); signal(ph + 1)
        k.stamp(2 + 3 * layer)
        await_(ph + 0); g2_loads(0, H); g2(0)
        if layer == 0: g2_mid1(0)
        else: out_store(0)
        await_(ph + 1); g2_loads(1, H); g2(1, hooks_w1() if layer == 0 else None)
        if layer == 0:
            g2_mid1(1)
            k.stamp(3)
            g2_mid2(0); signal(2)
            g2_mid2(1); signal(3)
            await_(2)
            for ks in range(20): tok_dma(WS_X3, 0, ks)
        else:
            out_store(1)
    k.stamp(6)
    if dbg:
        k(f"s_lshl_b32 s62, s2, 6\ns_add_u32 s62, s62, {WS_DBG + 8192}")
        k.stamp_flush(24, 62)
    k(f"{END}:")
    return k

if __name__ == "__main__":
    import sys
    from gen_k01 import gen_k01
    dbg = len(sys.argv) > 1
    k1 = gen_k01(dbg); k2 = gen_k2(dbg)
    open("full.s", "w").write(build([k1, k2], [k1, k2]))
    print("k01", k1.ninstr, k1.nnop, "k2", k2.ninstr, k2.nnop)
```

```python
import re

TRANS = ("v_exp_f32", "v_log_f32", "v_rcp_f32", "v_rsq_f32", "v_sqrt_f32", "v_sin_f32", "v_cos_f32", "v_rcp_iflag_f32")
_REG = re.compile(r"\b([vas])(\d+)\b|\b([vas])\[(\d+):(\d+)\]")

def regs_of(op):
    out = set()
    for m in _REG.finditer(op):
        if m.group(1):
            out.add((m.group(1), int(m.group(2))))
        else:
            for i in range(int(m.group(4)), int(m.group(5)) + 1):
                out.add((m.group(3), i))
    if re.search(r"\bvcc(_lo|_hi)?\b", op): out.add(("vcc", 0))
    if re.search(r"\bm0\b", op): out.add(("m0", 0))
    if re.search(r"\bexec(_lo|_hi)?\b", op): out.add(("exec", 0))
    return out

def split_ops(s):
    ops = []; depth = 0; cur = ""
    for ch in s:
        if ch == "[": depth += 1
        if ch == "]": depth -= 1
        if ch == "," and depth == 0:
            ops.append(cur.strip()); cur = ""
        else:
            cur += ch
    if cur.strip(): ops.append(cur.strip())
    return ops

class Ins:
    __slots__ = ("text", "mn", "kind", "wr", "rd", "passes", "srcc", "ab", "states", "dpp", "widestore", "sdata")
    def __init__(self, text):
        self.text = text
        t = text.split(";")[0].strip()
        parts = t.split(None, 1)
        mn = parts[0]; self.mn = mn
        rest = parts[1] if len(parts) > 1 else ""
        ops = split_ops(rest)
        self.wr = set(); self.rd = set(); self.passes = 0; self.srcc = set(); self.ab = set()
        self.states = 1; self.dpp = False; self.widestore = False; self.sdata = set()
        R = regs_of
        if mn == "s_nop":
            self.kind = "nop"; self.states = int(ops[0], 0) + 1
        elif mn.startswith("v_mfma"):
            self.kind = "mfma"
            self.passes = 8 if "32x32x16" in mn else 4
            self.wr = R(ops[0]); self.ab = R(ops[1]) | R(ops[2]); self.srcc = R(ops[3]); self.rd = self.ab | self.srcc
        elif mn.startswith("v_"):
            self.kind = "valu"
            self.dpp = ("_dpp" in mn) or ("quad_perm" in rest) or ("row_" in rest)
            if (mn.startswith("v_permlane") and "swap" in mn) or mn.startswith("v_swap"):
                self.wr = R(ops[0]) | R(ops[1]); self.rd = set(self.wr)
            elif mn.startswith("v_cmp"):
                self.wr = R(ops[0])
                for o in ops[1:]: self.rd |= R(o)
            elif mn.startswith(("v_add_co", "v_sub_co", "v_addc_co", "v_subb_co", "v_subrev_co")):
                self.wr = R(ops[0]) | R(ops[1])
                for o in ops[2:]: self.rd |= R(o)
            else:
                self.wr = R(ops[0])
                for o in ops[1:]: self.rd |= R(o)
                if mn.startswith(("v_fmac", "v_dot2c", "v_mac", "v_pk_fmac")) or self.dpp: self.rd |= self.wr
        elif mn.startswith("ds_"):
            self.kind = "ds"
            if mn.startswith(("ds_read", "ds_bpermute", "ds_permute", "ds_swizzle")):
                self.wr = R(ops[0])
                for o in ops[1:]: self.rd |= R(o)
            else:
                for o in ops: self.rd |= R(o)
        elif mn.startswith(("buffer_", "global_")):
            self.kind = "vmem"
            islds = bool(re.search(r"\blds\b", rest))
            if mn in ("buffer_wbl2", "buffer_inv"):
                pass
            elif "load" in mn and not islds:
                self.wr = R(ops[0])
                for o in ops[1:]: self.rd |= R(o)
            else:
                for o in ops: self.rd |= R(o)
                if islds: self.rd.add(("m0", 0))
                if "store" in mn and ("x3" in mn or "x4" in mn):
                    self.widestore = True
                    self.sdata = R(ops[0]) if mn.startswith("buffer") else R(ops[1])
                if "atomic" in mn and re.search(r"\bsc0\b", rest):
                    self.wr = R(ops[0])
        elif mn.startswith("s_"):
            self.kind = "salu"
            if mn.startswith(("s_waitcnt", "s_barrier", "s_branch", "s_cbranch", "s_sleep", "s_setprio", "s_endpgm", "s_cmp", "s_bitcmp")):
                for o in ops: self.rd |= R(o)
            else:
                if ops:
                    self.wr = R(ops[0])
                    for o in ops[1:]: self.rd |= R(o)
                if "saveexec" in mn: self.wr.add(("exec", 0))
        else:
            raise ValueError("unknown instr " + text)

def is_vec(r): return r[0] in ("v", "a")
def is_sc(r): return r[0] in ("s", "vcc")

def need(p, c):
    n = 0
    pv = {r for r in p.wr if is_vec(r)}
    if p.kind == "valu":
        if c.kind == "mfma" and pv & c.rd: n = max(n, 2)
        if c.kind == "valu":
            if p.mn.startswith(TRANS) and (pv & (c.rd | c.wr)): n = max(n, 1)
            if c.dpp and pv & c.rd: n = max(n, 2)
            if c.mn.startswith("v_permlane") and pv & c.rd: n = max(n, 2)
            if c.mn.startswith(("v_readfirstlane", "v_readlane")) and pv & c.rd: n = max(n, 1)
            if p.mn.startswith("v_dot") and (pv & (c.rd | c.wr)):
                n = max(n, 3)
            if "sdwa" in p.mn and pv & (c.rd | c.wr): n = max(n, 1)
        if p.mn.startswith(TRANS) and c.kind in ("ds", "vmem") and pv & c.rd: n = max(n, 1)
        if p.mn.startswith("v_dot") and c.kind in ("ds", "vmem", "mfma") and pv & c.rd: n = max(n, 3)
        ps = {r for r in p.wr if is_sc(r)}
        if ps:
            if c.kind == "valu" and ps & c.rd:
                n = max(n, 4 if c.mn.startswith(("v_readlane", "v_writelane")) else 2)
            if c.kind == "valu" and c.mn.startswith("v_cndmask") and ("vcc", 0) in ps: n = max(n, 2)
            if c.kind == "vmem" and ps & c.rd: n = max(n, 5)
            if c.kind == "salu" and ps & c.rd: n = max(n, 1)
    elif p.kind == "mfma":
        big = p.passes == 8
        if c.kind == "mfma":
            if pv & c.ab: n = max(n, 12 if big else 8)
            if pv & c.srcc:
                if not (c.srcc == pv and c.passes == p.passes): n = max(n, 10 if big else 6)
            if pv & c.wr and not (c.srcc == pv and c.passes == p.passes): n = max(n, 12 if big else 8)
        elif c.kind in ("valu", "ds", "vmem"):
            if pv & (c.rd | c.wr): n = max(n, 12 if big else 8)
            if c.kind == "valu" and (p.srcc & c.wr): n = max(n, 7 if big else 3)
            if c.kind in ("ds", "vmem") and (p.srcc & c.wr): n = max(n, 7 if big else 3)
    elif p.kind == "salu":
        if ("m0", 0) in p.wr and c.kind in ("vmem", "ds") and ("m0", 0) in c.rd: n = max(n, 1)
    elif p.kind == "vmem":
        if p.widestore and p.sdata & c.wr: n = max(n, 2)
    return n

class K:
    def __init__(self, name, grid, block, lds=0, vgpr=256, agpr=0, sgpr=102):
        self.name = name; self.grid = grid; self.block = block; self.lds = lds
        self.vgpr = vgpr; self.agpr = agpr; self.sgpr = sgpr
        self.lines = []
        self.hist = []
        self._lbl = 0
        self.vm = []
        self.lg = []
        self.nnop = 0
        self.issued = set()
        self.ninstr = 0
    def _emit(self, ln, tag=None):
        ins = Ins(ln)
        req = 0; dist = 0
        for p in reversed(self.hist):
            r = need(p, ins) - dist
            if r > req: req = r
            dist += p.states
            if dist > 14: break
        while req > 0:
            n = min(req, 16)
            nop = Ins(f"s_nop {n-1}")
            self.lines.append(f"    s_nop {n-1}"); self.hist.append(nop); req -= n; self.nnop += 1
        self.lines.append("    " + ln)
        self.hist.append(ins)
        self.ninstr += 1
        if len(self.hist) > 32: self.hist = self.hist[-32:]
        for (kind, n) in ins.wr | ins.rd:
            if kind == "v": assert n < self.vgpr, f"v{n} >= {self.vgpr}: {ln}"
            if kind == "a": assert n < self.agpr, f"a{n} >= {self.agpr}: {ln}"
            if kind == "s": assert n < self.sgpr, f"s{n}: {ln}"
        if ins.kind == "vmem": self.vm.append(tag)
        if ins.kind == "ds": self.lg.append(tag)
        if ins.kind in ("vmem", "ds") and tag is not None: self.issued.add(tag)
        if ins.mn == "s_waitcnt":
            m = re.search(r"vmcnt\((\d+)\)", ln)
            if m:
                n = int(m.group(1)); self.vm = self.vm[len(self.vm) - n:] if n < len(self.vm) and n > 0 else ([] if n == 0 else self.vm)
            m = re.search(r"lgkmcnt\((\d+)\)", ln)
            if m:
                n = int(m.group(1)); self.lg = self.lg[len(self.lg) - n:] if n < len(self.lg) and n > 0 else ([] if n == 0 else self.lg)
    def __call__(self, s, tag=None):
        for ln in s.strip("\n").split("\n"):
            ln = ln.strip()
            if not ln: continue
            if ln.startswith(";"):
                self.lines.append("    " + ln); continue
            if ln.endswith(":"):
                self.label(ln[:-1]); continue
            self._emit(ln, tag)
    def wait_vm(self, tag):
        assert tag in self.issued, f"wait_vm on never-issued tag {tag}"
        idx = [i for i, t in enumerate(self.vm) if t == tag]
        if not idx: return
        n = len(self.vm) - 1 - idx[-1]
        n = min(n, 63)
        self(f"s_waitcnt vmcnt({n})")
    def wait_lg(self, tag):
        assert tag in self.issued, f"wait_lg on never-issued tag {tag}"
        idx = [i for i, t in enumerate(self.lg) if t == tag]
        if not idx: return
        n = len(self.lg) - 1 - idx[-1]
        n = min(n, 15)
        self(f"s_waitcnt lgkmcnt({n})")
    def forget(self, pred):
        self.issued = {t for t in self.issued if not pred(t)}
    def label(self, l):
        self.lines.append(l + ":")
    def stamp(self, i):
        if getattr(self, "stb", None) is None: return
        self(f"s_memrealtime s[{self.stb+2*i}:{self.stb+2*i+1}]")
        self.nst = max(getattr(self, "nst", 0), i + 1)
    def stamp_flush(self, srd, soff_expr_reg, vtmp=0):
        if getattr(self, "stb", None) is None: return
        self("s_waitcnt lgkmcnt(0) vmcnt(0)")
        self.stamp(7)
        self("s_waitcnt lgkmcnt(0)")
        lbl = self.newlabel("Lst")
        self(f"v_cmp_eq_u32 vcc, 0, v0\ns_and_saveexec_b64 s[{self.stb+16}:{self.stb+17}], vcc\ns_cbranch_execz {lbl}")
        for i in range(8): self(f"v_mov_b32 v{8+i}, s{self.stb+2*i}")
        self(f"v_mov_b32 v1, 0\nbuffer_store_dwordx4 v[8:11], v1, s[{srd}:{srd+3}], s{soff_expr_reg} offen\nbuffer_store_dwordx4 v[12:15], v1, s[{srd}:{srd+3}], s{soff_expr_reg} offen offset:16")
        self(f"{lbl}:")
    def ts(self, name):
        if not getattr(self, "tl", False): return
        if not hasattr(self, "tsn"): self.tsn = []
        i = len(self.tsn); assert i < 64
        self.tsn.append(name)
        self(f"s_memrealtime s[100:101]\ns_waitcnt lgkmcnt(0)\nv_writelane_b32 v1, s100, {i}")
    def ts_flush(self, srd, base):
        if not getattr(self, "tl", False): return
        self("s_waitcnt vmcnt(0)")
        self.ts("end")
        lbl = self.newlabel("Lts")
        self(f"s_cmp_lg_u32 s40, {getattr(self, 'tlwave', 0)}\ns_cbranch_scc1 {lbl}")
        self(f"s_lshl_b32 s100, s2, 8\ns_add_u32 s100, s100, {base}\nv_and_b32 v0, 63, v0\nv_lshlrev_b32 v0, 2, v0")
        self(f"buffer_store_dword v1, v0, s[{srd}:{srd+3}], s100 offen\n{lbl}:")
    def fence(self, n=12):
        self(f"s_nop {n-1}")
    def newlabel(self, p="L"):
        self._lbl += 1
        return f"{p}_{self.name}_{self._lbl}"
    def text(self):
        o = [f".globl {self.name}", ".p2align 8", f".type {self.name},@function", f"{self.name}:"]
        o += self.lines
        o.append("    s_endpgm")
        return "\n".join(o)
    def desc(self):
        acc = (self.vgpr + 3) // 4 * 4
        nfv = acc + self.agpr if self.agpr else self.vgpr
        return f""".p2align 6
.amdhsa_kernel {self.name}
  .amdhsa_next_free_vgpr {nfv}
  .amdhsa_next_free_sgpr {self.sgpr}
  .amdhsa_accum_offset {acc}
  .amdhsa_group_segment_fixed_size 0
  .amdhsa_kernarg_size 104
  .amdhsa_user_sgpr_count 2
  .amdhsa_user_sgpr_kernarg_segment_ptr 1
  .amdhsa_system_sgpr_workgroup_id_x 1
  .amdhsa_float_denorm_mode_32 3
  .amdhsa_float_denorm_mode_16_64 3
.end_amdhsa_kernel"""

HEADER = """; Kernarg layout for this problem (104 bytes, ptrs only, base s[0:1]):
"""

def build(launches, kernels):
    o = HEADER
    for k in launches:
        o += f"; @launch kernel={k.name} grid=({k.grid},1,1) block=({k.block},1,1) lds={k.lds}\n"
    o += '.amdgcn_target "amdgcn-amd-amdhsa--gfx950"\n.text\n'
    for k in kernels:
        o += k.text() + "\n"
    o += '.section .rodata,"a"\n'
    for k in kernels:
        o += k.desc() + "\n"
    return o
```

```python
from gen_common import *

HCP = 4160
UROFF = 4 * HCP
CP = UROFF + 4608
STF = " sc1"
HWAIT = True
CLK = False

def prologue(k, endlbl):
    k(f"""
    s_cmp_ge_u32 s2, 256
    s_cbranch_scc1 {endlbl}
    """)
    if k.stb is not None:
        for i in range(8): k.stamp(i)
    k(f"""
    s_load_dwordx16 s[64:79], s[0:1], 0
    s_load_dwordx4 s[80:83], s[0:1], 64
    s_load_dwordx2 s[20:21], s[0:1], 88
    s_load_dwordx2 s[24:25], s[0:1], 96
    v_lshlrev_b32 v3, 4, v0                 ; tid*16
    """)

def prologue2(k):
    k(f"""
    v_lshrrev_b32 v1, 6, v0
    v_and_b32 v2, 63, v0                    ; lane
    v_readfirstlane_b32 s{S_WAVE}, v1
    s_mov_b32 s50, 0x05040100
    s_mov_b32 s51, 0x07060302
    s_mov_b32 s{S_SPIN}, {SPIN}
    s_mov_b32 s22, 256
    s_mov_b32 s23, 0x20000
    s_mov_b32 s26, {WS_SIZE}
    s_mov_b32 s27, 0x20000
    """)

def code_prefetch(k, start, end, nbytes, vt):
    n16 = (nbytes + 16383) // 16384
    k(f"""
    s_getpc_b64 s[28:29]
    Lpc_{k.name}:
    s_add_u32 s28, s28, {start}-Lpc_{k.name}
    s_addc_u32 s29, s29, -1
    s_mov_b32 s30, {end}-{start}
    s_mov_b32 s31, 0x20000
    s_lshr_b32 s3, s2, 3
    s_and_b32 s3, s3, 3
    s_lshl_b32 s3, s3, 12
    """)
    for i in range(n16):
        k(f"buffer_load_dwordx4 v[{vt}:{vt+3}], v3, s[28:31], s3 offen")
        if i < n16 - 1: k("s_add_u32 s3, s3, 16384")

def phase1(k, endlbl):
    lskip = k.newlabel("Lp1")
    k(f"""
    s_and_b32 s41, s2, 7                    ; cb
    s_lshr_b32 s42, s2, 3                   ; rb
    v_lshrrev_b32 v4, 4, v0
    v_min_u32 v4, 9, v4                     ; Gl
    v_and_b32 v5, 15, v0                    ; tql
    s_lshl_b32 s3, s42, 4
    v_add_u32 v6, s3, v5                    ; tq
    v_mul_u32_u24 v7, 5120, v6
    s_mul_i32 s3, s41, 160
    v_lshl_add_u32 v7, v4, 4, v7
    v_add_u32 v7, s3, v7
    s_mov_b32 s5, 0x7fffff00
    v_subrev_u32 v56, 3840, v7
    v_subrev_u32 v57, 2560, v7
    v_subrev_u32 v58, 1280, v7
    v_min_u32 v56, s5, v56
    v_min_u32 v57, s5, v57
    v_min_u32 v58, s5, v58
    s_mul_i32 s3, s41, 640
    v_lshlrev_b32 v59, 6, v4
    v_add_u32 v59, s3, v59
    """)
    prologue2(k)
    k("s_waitcnt lgkmcnt(0)")
    srd(k, 8, 66, 67, NB); srd(k, 12, 68, 69, NB); srd(k, 16, 70, 71, 640 * 8)
    nonce_publish(k, 8)
    k.vm = []
    k(f"s_cmp_eq_u32 s{S_WAVE}, 3\ns_cbranch_scc1 {lskip}")
    k("""
    buffer_load_dwordx4 v[108:111], v59, s[16:19], 0 offen
    buffer_load_dwordx4 v[112:115], v59, s[16:19], 0 offen offset:16
    buffer_load_dwordx4 v[116:119], v59, s[16:19], 0 offen offset:32
    buffer_load_dwordx4 v[120:123], v59, s[16:19], 0 offen offset:48
    """, tag="sh")
    k("""
    buffer_load_dwordx4 v[76:79], v7, s[8:11], 0 offen
    buffer_load_dwordx4 v[80:83], v7, s[8:11], 0 offen offset:1280
    buffer_load_dwordx4 v[84:87], v7, s[8:11], 0 offen offset:2560
    buffer_load_dwordx4 v[88:91], v7, s[8:11], 0 offen offset:3840
    buffer_load_dwordx4 v[92:95], v7, s[12:15], 0 offen
    buffer_load_dwordx4 v[96:99], v7, s[12:15], 0 offen offset:1280
    buffer_load_dwordx4 v[100:103], v7, s[12:15], 0 offen offset:2560
    buffer_load_dwordx4 v[104:107], v7, s[12:15], 0 offen offset:3840
    buffer_load_dwordx4 v[64:67], v56, s[8:11], 0 offen
    buffer_load_dwordx4 v[68:71], v57, s[8:11], 0 offen
    buffer_load_dwordx4 v[72:75], v58, s[8:11], 0 offen
    """, tag="kv")
    k(f"""
    v_lshlrev_b32 v63, 15, v4               ; 2Gl*16384
    v_lshl_add_u32 v63, v6, 4, v63          ; + tq*16
    s_mul_i32 s3, s41, {20*16384}
    s_add_u32 s36, s3, {WS_KT}
    s_add_u32 s37, s3, {WS_KT + 8192}
    s_add_u32 s38, s3, {WS_KT + 16384}
    s_add_u32 s39, s3, {WS_KT + 24576}
    """)
    k.wait_vm("sh")
    SH = 124
    for p in range(4):
        for j in range(4):
            unpack(k, SH + 8 * p + 2 * j, 108 + 2 * (2 * p) + (j >> 1), j & 1)
            unpack(k, SH + 8 * p + 2 * j + 1, 108 + 2 * (2 * p + 1) + (j >> 1), j & 1)
    k("s_waitcnt vmcnt(0)")
    k.stamp(1)
    for p in range(4):
        for rho in range(7):
            unpack_lo(k, 8 + 2 * rho, 64 + 4 * rho + p); unpack_hi(k, 9 + 2 * rho, 64 + 4 * rho + p)
        for i in range(4):
            a = 32 + 2 * i
            unpack_lo(k, 30, 92 + 4 * i + p); unpack_hi(k, 31, 92 + 4 * i + p)
            k(f"v_pk_mul_f32 v[{a}:{a+1}], v[{8+2*i}:{9+2*i}], v[{SH+8*p+6}:{SH+8*p+7}]")
            for j in (2, 1, 0):
                rho = i + 3 - j
                k(f"v_pk_fma_f32 v[{a}:{a+1}], v[{8+2*rho}:{9+2*rho}], v[{SH+8*p+2*j}:{SH+8*p+2*j+1}], v[{a}:{a+1}]")
            k(f"v_pk_mul_f32 v[{a}:{a+1}], v[{a}:{a+1}], v[30:31]")
        for e in range(2):
            c = 2 * p + e
            k(f"v_cvt_pk_bf16_f32 v{40+2*c}, v{38+e}, v{36+e}\nv_cvt_pk_bf16_f32 v{41+2*c}, v{34+e}, v{32+e}")
        k(f"buffer_store_dwordx4 v[{40+4*p}:{43+4*p}], v63, s[24:27], s{36+p} offen sc1", tag="kts")
    k(f"{lskip}:")
    k.hist = []

def p1_signal(k, endlbl, nafter):
    lw = k.newlabel("Lcw"); l3 = k.newlabel("Lc3")
    k(f"""
    s_cmp_lg_u32 s{S_WAVE}, 3
    s_cbranch_scc1 {l3}
    """)
    sv = list(k.vm)
    nonce_get(k, 16, endlbl)
    k.vm = sv
    k(f"""
    {l3}:
    s_waitcnt vmcnt({nafter})
    s_barrier
    """)
    k.stamp(2)
    k(f"""
    s_cmp_lg_u32 s{S_WAVE}, 3
    s_cbranch_scc1 {lw}
    s_lshl_b32 s6, s41, 5
    s_add_u32 s6, s6, s42
    s_lshl_b32 s6, s6, {FLS}
    s_add_u32 s6, s6, {WS_FL}
    """)
    sv = list(k.vm)
    flag_set(k, 16, 6)
    k.vm = sv
    k(f"{lw}:")

def conv_role(k, endlbl):
    k(f"""
    s_mul_i32 s46, s41, 20
    s_add_u32 s46, s46, s42                 ; g4
    s_lshl_b32 s43, s46, 2
    s_add_u32 s43, s43, s{S_WAVE}
    s_lshl_b32 s4, s43, 12
    s_add_u32 s32, s72, s4
    s_addc_u32 s33, s73, 0
    s_mov_b32 s34, 4096
    s_mov_b32 s35, 0x20000
    v_lshlrev_b32 v60, 4, v2                ; lane*16
    v_subrev_u32 v61, 32, v60
    v_subrev_u32 v62, 16, v60
    v_min_u32 v61, s5, v61
    v_min_u32 v62, s5, v62
    """)
    k.vm = []
    lh3 = k.newlabel("Lh3")
    def hloads():
        for rho in range(4):
            w = 160 + 8 * rho
            k(f"buffer_load_dwordx4 v[{w}:{w+3}], v60, s[32:35], 0 offen offset:{1024*rho}\nbuffer_load_dwordx2 v[{w+4}:{w+5}], v60, s[32:35], 0 offen offset:{1024*rho+16}", tag="h")
        k("buffer_load_dwordx4 v[192:195], v61, s[32:35], 0 offen\nbuffer_load_dwordx2 v[196:197], v62, s[32:35], 0 offen", tag="h")
    hloads()
    k(f"""
    s_lshl_b32 s4, s43, 1
    s_and_b32 s4, s4, -4
    s_load_dword s44, s[74:75], s4          ; D pair
    s_mul_i32 s45, s{S_WAVE}, {CP}
    v_and_b32 v8, 15, v2                    ; n / m
    v_lshrrev_b32 v9, 4, v2                 ; kq / q
    """)
    p1_signal(k, endlbl, 10)
    k(f"""
    v_mov_b32 v12, 0
    v_mov_b32 v13, 0
    v_mov_b32 v14, 0
    v_mov_b32 v15, 0
    v_and_b32 v10, 31, v2
    v_lshlrev_b32 v10, 4, v10
    v_add_u32 v10, s45, v10
    ds_write_b128 v10, v[12:15] offset:{UROFF + 4096}
    v_add_u32 v18, 1, v8                    ; m+1
    v_and_b32 v19, 3, v18                   ; e
    v_sub_u32 v18, v18, v19
    v_lshl_add_u32 v18, v9, 3, v18
    v_lshlrev_b32 v18, 1, v18
    v_mul_u32_u24 v19, {HCP}, v19
    v_add3_u32 v228, v18, v19, s45          ; vA
    v_lshlrev_b32 v18, 5, v8
    v_sub_u32 v18, {UROFF + 480}, v18
    v_lshl_add_u32 v18, v9, 4, v18
    v_add_u32 v229, s45, v18                ; vB
    v_lshlrev_b32 v19, 3, v0
    v_sub_u32 v230, {UROFF + 4088 - 2048}, v19
    v_add_u32 v231, {2*CP}, v230
    v_lshlrev_b32 v232, 5, v8
    v_lshl_add_u32 v232, v9, 3, v232
    v_add_u32 v232, s45, v232
    v_lshlrev_b32 v233, 2, v0
    v_add_u32 v234, {2*CP}, v233
    v_lshlrev_b32 v235, {FLS}, v2
    v_add_u32 v236, s45, v60
    s_waitcnt lgkmcnt(0)
    s_and_b32 s4, s43, 1
    s_lshl_b32 s4, s4, 4
    s_lshr_b32 s44, s44, s4
    s_and_b32 s44, s44, 0xffff              ; D bits
    v_lshl_add_u32 v18, v9, 3, v8
    v_sub_u32 v18, 15, v18                  ; j*
    v_and_b32 v19, 1, v18
    v_lshlrev_b32 v19, 4, v19
    v_lshlrev_b32 v19, v19, s44
    v_lshrrev_b32 v18, 1, v18
    """)
    for e in range(4):
        k(f"v_cmp_eq_u32 vcc, {e}, v18\nv_cndmask_b32 v{224+e}, 0, v19, vcc")
    k("s_waitcnt vmcnt(0)")
    for rho in range(5):
        w = 160 + 8 * rho; off = 32 + 1024 * rho if rho < 4 else 0
        t = 64 + 12 * rho
        k(f"ds_write_b128 v236, v[{w}:{w+3}] offset:{off}")
        for i in range(4): k(f"v_alignbyte_b32 v{t+i}, v{w+i+1}, v{w+i}, 2")
        k(f"ds_write_b128 v236, v[{t}:{t+3}] offset:{off + HCP}")
        for i in range(4): k(f"v_mov_b32 v{t+4+i}, v{w+1+i}")
        k(f"ds_write_b128 v236, v[{t+4}:{t+7}] offset:{off + 2*HCP}")
        for i in range(4): k(f"v_alignbyte_b32 v{t+8+i}, v{w+i+2}, v{w+i+1}, 2")
        k(f"ds_write_b128 v236, v[{t+8}:{t+11}] offset:{off + 3*HCP}")
    lw = k.newlabel("Lcw")
    k(f"""
    s_lshl_b32 s47, s46, 14                 ; g4*16384
    s_add_u32 s36, s47, {WS_KT}
    s_lshl_b32 s7, s41, {5+FLS}
    s_add_u32 s7, s7, {WS_FL}
    s_cmp_lg_u32 s{S_WAVE}, 3
    s_cbranch_scc1 {lw}
    """)
    flag_wait(k, 16, 235, 7, 32, endlbl)
    k(f"{lw}:")
    k("s_barrier")
    k.stamp(3)
    k.vm = []
    for i in range(4):
        k(f"buffer_load_dwordx4 v[{208+4*i}:{211+4*i}], v3, s[24:27], s36 offen sc1", tag=("kt", i))
        if i < 3: k("s_add_u32 s36, s36, 4096")
    ACC = 32
    def bufA(p, b): return 64 + 64 * p + 4 * b
    def bufB(p, a): return 96 + 64 * p + 4 * a
    def rdA(r, x):
        a = bufA(r & 1, x)
        return [f"ds_read_b64 v[{a}:{a+1}], v228 offset:{512*x + 64*r}", f"ds_read_b64 v[{a+2}:{a+3}], v228 offset:{512*x + 64*r + 8}"]
    def rdB(r, x):
        b = bufB(r & 1, x)
        return [f"ds_read_b128 v[{b}:{b+3}], v229 offset:{512*(7-x) + 64*r}"]
    k("s_waitcnt lgkmcnt(0)")
    for x in range(8):
        for rd in rdA(0, x): k(rd)
    for i in range(4):
        k.wait_vm(("kt", i))
        for e in range(2):
            k(f"ds_write_b64 v{230 + (i>>1)}, v[{208+4*i+2*e}:{209+4*i+2*e}] offset:{e*CP + 2048*(1-(i&1))}")
    k("s_waitcnt lgkmcnt(0)\ns_barrier")
    k.stamp(4)
    k("s_waitcnt lgkmcnt(0)")
    pairs = sorted([(b, a) for b in range(8) for a in range(8) if a + b <= 7], key=lambda t: (max(t), t))
    pairs0 = sorted([(b, a) for b in list(range(8)) + ["D"] for a in range(8) if b == "D" or a + b <= 7], key=lambda t: t[1])
    for x in range(8):
        for rd in rdB(0, x): k(rd, tag=("r", 0, x))
    started = set()
    NR = 8
    for r in range(NR):
        nxt = []
        if r < NR - 1:
            for x in range(8): nxt += rdA(r + 1, x) + rdB(r + 1, x)
        p = r & 1
        plist = pairs0 if r == 0 else pairs
        for n, (b, a) in enumerate(plist):
            if r == 0:
                k.wait_lg(("r", 0, a))
            elif n == 0:
                k("s_waitcnt lgkmcnt(0)")
            i = a + b if b != "D" else a
            c = f"v[{ACC+4*i}:{ACC+4*i+3}]" if i in started else "0"
            started.add(i)
            areg = bufA(p, b) if b != "D" else 224
            k(f"v_mfma_f32_16x16x32_bf16 v[{ACC+4*i}:{ACC+4*i+3}], v[{areg}:{areg+3}], v[{bufB(p,a)}:{bufB(p,a)+3}], {c}")
            if r == 0 and n == 8: k.wait_lg(("r", 0, 7))
            if nxt and (r > 0 or n >= 8): k(nxt.pop(0), tag=("r", r + 1))
        while nxt: k(nxt.pop(0), tag=("r", r + 1))
    k.stamp(5)
    k(f"s_add_u32 s37, s47, {WS_Y4}")
    for t in range(8):
        a = ACC + 4 * t
        k(f"v_cvt_pk_bf16_f32 v{64+2*t}, v{a}, v{a+1}\nv_cvt_pk_bf16_f32 v{65+2*t}, v{a+2}, v{a+3}")
        k(f"ds_write_b64 v232, v[{64+2*t}:{65+2*t}] offset:{512*t}")
    k("s_waitcnt lgkmcnt(0)\ns_barrier")
    for i in range(4):
        for c in range(4): k(f"ds_read_b32 v{96+4*i+c}, v{233 if c < 2 else 234} offset:{(c&1)*CP + 1024*i}", tag=("ys", i))
    for i in range(4):
        Y = 96 + 4 * i; oy = 128 + 4 * i
        k.wait_lg(("ys", i))
        for tk in range(2):
            sel = "s51" if tk else "s50"
            k(f"v_perm_b32 v{oy+2*tk}, v{Y+1}, v{Y}, {sel}\nv_perm_b32 v{oy+2*tk+1}, v{Y+3}, v{Y+2}, {sel}")
        k(f"buffer_store_dwordx4 v[{oy}:{oy+3}], v3, s[24:27], s37 offen{STF}")
        if i < 3: k("s_add_u32 s37, s37, 4096")
    k.stamp(6)

def transp_lds(k, src, offs):
    for ci in range(8):
        sel = "s51" if ci & 1 else "s50"
        o = 192 + 4 * ci
        for e in range(4):
            k(f"v_perm_b32 v{o+e}, v{src+4*(2*e+1)+(ci>>1)}, v{src+4*(2*e)+(ci>>1)}, {sel}")
        av, off = offs[ci]
        k(f"ds_write_b128 v{av}, v[{o}:{o+3}] offset:{off}")

QTP = 528
FRP = 1040
def helper_role(k, endlbl):
    lq, lsn, lw2, lq2, lsn2, lw3 = [k.newlabel("Lh") for _ in range(6)]
    k(f"""
    s_sub_u32 s43, s2, 160                  ; bw
    s_lshl_b32 s44, s43, 2
    s_add_u32 s44, s44, s{S_WAVE}           ; Wv
    v_and_b32 v8, 15, v2
    v_lshrrev_b32 v9, 4, v2                 ; kq
    v_lshlrev_b32 v238, 4, v2               ; lane*16
    s_mul_i32 s45, s{S_WAVE}, {16*FRP}
    v_add_u32 v239, s45, v238
    v_lshlrev_b32 v235, {FLS}, v2
    """)
    k.vm = []
    p1_signal(k, endlbl, 0)
    k.vm = []
    k(f"s_cmp_ge_u32 s43, 60\ns_cbranch_scc1 {lq}")
    srd(k, 8, 78, 79, 640 * 1536 * 2); srd(k, 16, 80, 81, 640 * 1536 * 2)
    k(f"""
    s_mul_i32 s52, s44, 171
    s_lshr_b32 s52, s52, 11
    s_mul_i32 s3, s52, 12
    s_sub_u32 s53, s44, s3                  ; fg
    s_mul_i32 s7, s52, {32*3072}
    s_lshl_b32 s3, s53, 8
    s_add_u32 s7, s7, s3
    v_mul_u32_u24 v16, {8*3072}, v9
    v_lshl_add_u32 v16, v8, 4, v16
    """)
    for j in range(8):
        k(f"buffer_load_dwordx4 v[{32+4*j}:{35+4*j}], v16, s[8:11], s7 offen")
        k(f"buffer_load_dwordx4 v[{64+4*j}:{67+4*j}], v16, s[16:19], s7 offen")
        if j < 7: k(f"s_add_u32 s7, s7, 3072")
    k(f"s_branch {lw2}\n{lq}:\ns_cmp_ge_u32 s43, 92\ns_cbranch_scc1 {lw2}")
    srd(k, 16, 64, 65, NB)
    k(f"""
    s_sub_u32 s3, s44, 240
    s_lshl_b32 s3, s3, 4
    v_lshrrev_b32 v7, 3, v2
    v_add_u32 v4, s3, v7                    ; row (h=0)
    v_mul_u32_u24 v5, 1280, v4
    v_and_b32 v6, 7, v2                     ; part
    v_lshl_add_u32 v5, v6, 4, v5
    s_movk_i32 s7, 10240
    """)
    for h in range(2):
        for i in range(10): k(f"buffer_load_dwordx4 v[{16+40*h+4*i}:{19+40*h+4*i}], v5, s[16:19], {'s7' if h else '0'} offen offset:{128*i}")
    k(f"{lw2}:\ns_nop 1")
    srd(k, 12, 82, 83, 1536 * 640 * 2)
    R = 96
    k(f"""
    s_lshr_b32 s46, s44, 3                  ; kstep
    s_and_b32 s47, s44, 7                   ; ct2
    s_mul_i32 s3, s46, 171
    s_lshr_b32 s3, s3, 9                    ; ct
    s_mul_i32 s4, s3, 3
    s_sub_u32 s4, s46, s4                   ; g
    s_mul_i32 s3, s3, 96
    s_mul_i32 s5, s4, 24
    s_add_u32 s5, s5, s3
    s_lshl_b32 s6, s4, 3
    s_add_u32 s6, s6, s3
    s_add_u32 s6, s6, 72
    s_mul_i32 s5, s5, 1280
    s_mul_i32 s6, s6, 1280
    s_mul_i32 s7, s47, 160
    s_add_u32 s5, s5, s7
    s_add_u32 s6, s6, s7
    s_add_u32 s48, s5, 10240
    s_add_u32 s49, s5, 20480
    v_min_u32 v14, 9, v8                    ; u
    v_mul_u32_u24 v15, 2560, v9
    v_lshl_add_u32 v15, v14, 4, v15
    buffer_load_dwordx4 v[{R}:{R+3}], v15, s[12:15], s5 offen
    buffer_load_dwordx4 v[{R+4}:{R+7}], v15, s[12:15], s5 offen offset:1280
    buffer_load_dwordx4 v[{R+8}:{R+11}], v15, s[12:15], s48 offen
    buffer_load_dwordx4 v[{R+12}:{R+15}], v15, s[12:15], s48 offen offset:1280
    buffer_load_dwordx4 v[{R+16}:{R+19}], v15, s[12:15], s49 offen
    buffer_load_dwordx4 v[{R+20}:{R+23}], v15, s[12:15], s49 offen offset:1280
    buffer_load_dwordx4 v[{R+24}:{R+27}], v15, s[12:15], s6 offen
    buffer_load_dwordx4 v[{R+28}:{R+31}], v15, s[12:15], s6 offen offset:1280
    s_cmp_ge_u32 s43, 60
    s_cbranch_scc1 {lq2}
    v_mul_u32_u24 v17, {FRP}, v8
    v_lshl_add_u32 v17, v9, 8, v17
    v_add_u32 v17, s45, v17
    s_waitcnt vmcnt(8)
    """)
    k.stamp(3)
    transp_lds(k, 32, [(17, 64 * (fi >> 1) + 16 * (fi & 1)) for fi in range(8)])
    transp_lds(k, 64, [(17, 64 * (fi >> 1) + 16 * (fi & 1) + 32) for fi in range(8)])
    k("s_waitcnt lgkmcnt(0)")
    for f in range(16): k(f"ds_read_b128 v[{32+4*f}:{35+4*f}], v239 offset:{f*FRP}", tag=("f", f))
    k(f"s_lshl_b32 s54, s53, 4\ns_mul_i32 s55, s52, 3072\ns_add_u32 s55, s55, {WS_W1P}")
    for f in range(16):
        k(f"""
        s_add_u32 s3, s54, {f}                  ; fo
        s_mul_i32 s4, s3, 171
        s_lshr_b32 s4, s4, 9                    ; cw
        s_mul_i32 s5, s4, {57*1024}
        s_lshl_b32 s3, s3, 10
        s_add_u32 s3, s3, s5
        s_add_u32 s3, s3, s55
        """)
        k.wait_lg(("f", f))
        k(f"buffer_store_dwordx4 v[{32+4*f}:{35+4*f}], v238, s[24:27], s3 offen{STF}")
    k(f"s_waitcnt vmcnt(16)\ns_branch {lw3}\n{lq2}:\ns_cmp_ge_u32 s43, 92\ns_cbranch_scc1 {lsn2}")
    k("s_mov_b32 s3, 0x3f803f80\ns_waitcnt vmcnt(8)")
    k.stamp(3)
    for h in range(2):
        A = 176 + 4 * h
        for i in range(10):
            for d in range(4):
                r = 16 + 40 * h + 4 * i + d
                first = i == 0 and d < 2
                k(f"v_dot2_f32_bf16 v{A+2*(d&1)}, v{r}, s3, " + ("0" if first else f"v{A+2*(d&1)}"))
                k(f"v_dot2_f32_bf16 v{A+1+2*(d&1)}, v{r}, v{r}, " + ("0" if first else f"v{A+1+2*(d&1)}"))
    for h in range(2):
        A = 176 + 4 * h
        k(f"v_add_f32 v{A}, v{A}, v{A+2}\nv_add_f32 v{A+1}, v{A+1}, v{A+3}")
    for mod in ("quad_perm:[1,0,3,2]", "quad_perm:[2,3,0,1]", "row_half_mirror"):
        for r in (176, 177, 180, 181): k(f"v_add_f32_dpp v{r}, v{r}, v{r} {mod} row_mask:0xf bank_mask:0xf")
    for h in range(2):
        A = 176 + 4 * h
        ln_scalars(k, A, A + 1, A + 2)
        k(f"v_mul_f32 v{A}, v{A}, v{A+1}")
    k(f"""
    v_lshlrev_b32 v4, 3, v4
    s_mov_b32 s3, {WS_SQ}
    s_mov_b32 exec_lo, 0x01010101
    s_mov_b32 exec_hi, 0x01010101
    buffer_store_dwordx2 v[176:177], v4, s[24:27], s3 offen
    buffer_store_dwordx2 v[180:181], v4, s[24:27], s3 offen offset:64
    s_mov_b64 exec, -1
    s_waitcnt vmcnt(2)
    """)
    k(f"""
    s_branch {lw3}
    {lsn2}:
    v_mov_b32 v192, -1
    v_mov_b32 v193, -1
    v_mov_b32 v194, -1
    v_mov_b32 v195, -1
    s_sub_u32 s3, s43, 92
    s_lshl_b32 s3, s3, 16
    s_add_u32 s3, s3, {WS_ST}
    """)
    for i in range(16):
        k(f"buffer_store_dwordx4 v[192:195], v3, s[24:27], s3 offen{STF}")
        if i < 15: k("s_add_u32 s3, s3, 4096")
    k(f"""
    s_waitcnt vmcnt(16)
    {lw3}:
    s_nop 1
    """)
    k.stamp(4)
    k(f"""
    v_lshrrev_b32 v19, 2, v14
    v_mul_u32_u24 v19, {2*FRP}, v19
    v_and_b32 v20, 3, v14
    v_cmp_le_u32 vcc, 8, v14
    v_lshlrev_b32 v21, 6, v20
    v_lshlrev_b32 v22, 7, v20
    v_cndmask_b32 v21, v21, v22, vcc
    v_add_u32 v19, v19, v21
    v_mov_b32 v21, {FRP}
    v_cndmask_b32 v21, v21, 64, vcc
    v_lshl_add_u32 v19, v9, 8, v19
    v_add_u32 v24, s45, v19
    v_add_u32 v25, v24, v21
    s_mul_i32 s3, s47, 48
    s_add_u32 s3, s3, s46
    s_mul_i32 s3, s3, 5120
    s_add_u32 s3, s3, {WS_W2P}
    s_add_u32 s4, s3, 4096
    s_waitcnt lgkmcnt(0)
    """)
    transp_lds(k, R, [(24 if di < 4 else 25, 16 * (di & 3)) for di in range(8)])
    k("s_waitcnt lgkmcnt(0)")
    for f in range(5): k(f"ds_read_b128 v[{128+4*f}:{131+4*f}], v239 offset:{f*FRP}", tag=("g", f))
    for f in range(5):
        k.wait_lg(("g", f))
        if f < 4: k(f"buffer_store_dwordx4 v[{128+4*f}:{131+4*f}], v238, s[24:27], s3 offen offset:{1024*f}{STF}")
        else: k(f"buffer_store_dwordx4 v[{128+4*f}:{131+4*f}], v238, s[24:27], s4 offen{STF}")
    if not L2PF:
        k.stamp(6); return
    lp = k.newlabel("Lhp")
    k(f"""
    s_waitcnt vmcnt(0)
    s_barrier
    """)
    k.stamp(5)
    k(f"""
    s_cmp_lg_u32 s{S_WAVE}, 3
    s_cbranch_scc1 {lp}
    s_lshl_b32 s3, s43, {FLS}
    s_add_u32 s3, s3, {WS_FL + ((256 + 64) << FLS)}
    """)
    flag_set(k, 180, 3)
    k(f"s_mov_b32 s3, {WS_FL + ((256 + 64) << FLS)}")
    flag_wait(k, 180, 235, 3, 64, endlbl)
    k(f"s_mov_b32 s3, {WS_FL + ((256 + 128) << FLS)}")
    flag_wait(k, 180, 235, 3, 32, endlbl)
    k(f"""
    {lp}:
    s_barrier
    s_and_b32 s3, s2, 3
    s_mul_i32 s4, s3, {960*1024}
    s_lshr_b32 s5, s43, 3
    s_mul_i32 s5, s5, {80*1024}
    s_add_u32 s4, s4, s5
    s_add_u32 s4, s4, {WS_W1P}
    s_and_b32 s3, s2, 1
    s_mul_i32 s6, s3, {960*1024}
    s_add_u32 s6, s6, s5
    s_add_u32 s6, s6, {WS_W2P}
    """)
    for base in (4, 6):
        for i in range(20):
            k(f"buffer_load_dwordx4 v[{32+4*i}:{35+4*i}], v3, s[24:27], s{base} offen sc1")
            if i < 19: k(f"s_add_u32 s{base}, s{base}, 4096")
    k.stamp(6)

L2PF = False
def gen_k01(dbg=False, code_end="Lk01_end", code_bytes=20000):
    k = K("k01_kernel", 256, 256, lds=4 * CP, vgpr=256, sgpr=102)
    k.stb = 84 if dbg else None
    prologue(k, "Lk01_end")
    code_prefetch(k, "k01_kernel", code_end, code_bytes, 240)
    phase1(k, "Lk01_end")
    k("s_cmp_ge_u32 s2, 160\ns_cbranch_scc1 Lk01_help")
    conv_role(k, "Lk01_end")
    k("s_branch Lk01_fin")
    k.hist = []; k.vm = []; k.lg = []
    k("Lk01_help:")
    helper_role(k, "Lk01_end")
    k("Lk01_fin:")
    if dbg:
        k(f"s_lshl_b32 s62, s2, 5\ns_add_u32 s62, s62, {WS_DBG}")
        k.stamp_flush(24, 62)
    k("Lk01_end:")
    return k

if __name__ == "__main__":
    import sys
    CLK = len(sys.argv) > 2
    k = gen_k01(len(sys.argv) > 1)
    open("k01.s", "w").write(build([k], [k]))
    print("k01", k.ninstr, k.nnop)
```

```python
from asmlib import *

def cost_of(ln):
    mn = ln.split()[0]
    if mn.startswith(TRANS): return 2
    if mn.startswith(("buffer_", "global_")): return 2
    if mn.startswith("v_dot"): return 2
    if mn.startswith("v_mfma"): return 2
    return 1

class Rec:
    def __init__(self, k): self.k = k; self.items = []
    def __call__(self, s, tag=None):
        for ln in s.strip("\n").split("\n"):
            ln = ln.strip()
            if not ln or ln.startswith(";"): continue
            assert not ln.endswith(":") and "branch" not in ln, ln
            self.items.append((cost_of(ln), (lambda ln=ln, tag=tag: self.k(ln, tag))))
    def wait_vm(self, tag): self.items.append((1, lambda: self.k.wait_vm(tag)))
    def wait_lg(self, tag): self.items.append((1, lambda: self.k.wait_lg(tag)))
    def atomic(self, fn, cost=2): self.items.append((cost, fn))
    def hold(self, n): self.items.append(("hold", n))
    def until(self, key): self.items.append(("until", key))
    def ts(self, name): self.items.append((1, lambda: self.k.ts(name)))
    def newlabel(self, p): return self.k.newlabel(p)

class Glob:
    def __init__(self, k, pace=16):
        self.k = k; self.bg = []; self.done = set(); self.t = 0; self.last = -100; self.pace = pace
    def mark(self, key): self.done.add(key)
    def push(self, tag, fn, cond=None): self.bg.append((tag, cond, fn))
    def ready(self): return self.bg and (self.bg[0][1] is None or self.bg[0][1] in self.done)
    def emit(self):
        tag, cond, fn = self.bg.pop(0)
        assert cond is None or cond in self.done, (tag, cond)
        n0 = self.k.ninstr; fn(); self.last = self.t
        return self.k.ninstr - n0
    def tick(self, n):
        self.t += n
        if self.t - self.last >= self.pace and self.ready(): return self.emit()
        return 0
    def need(self, tag):
        while tag not in self.k.issued: self.emit()
        self.k.wait_vm(tag)
    def burst(self, n=1000):
        while n > 0 and self.ready(): self.emit(); n -= 1

class Direct:
    def __init__(self, k, G=None): self.k = k; self.G = G
    def __call__(self, s, tag=None):
        for ln in s.strip("\n").split("\n"):
            ln = ln.strip()
            if not ln: continue
            self.k(ln, tag)
            if self.G and not ln.startswith(";"): self.G.tick(cost_of(ln))
    def wait_vm(self, tag): self.k.wait_vm(tag)
    def wait_lg(self, tag): self.k.wait_lg(tag)
    def atomic(self, fn, cost=2): fn()
    def hold(self, n): pass
    def until(self, key): pass
    def ts(self, name): self.k.ts(name)
    def newlabel(self, p): return self.k.newlabel(p)

class Sched:
    def __init__(self, G, sides): self.G = G; self.sides = [s for s in sides if s is not None]
    def gap(self, budget):
        budget -= self.G.tick(4)
        for sd in self.sides:
            while sd.items and budget > 0:
                c, fn = sd.items[0]
                if c == "hold":
                    if fn <= 0: sd.items.pop(0); continue
                    sd.items[0] = ("hold", fn - 1); break
                if c == "until":
                    if fn in self.G.done: sd.items.pop(0); continue
                    break
                if c > budget and budget < 2: break
                sd.items.pop(0); fn(); budget -= c
    def flush(self, only=None):
        for sd in (only if only is not None else self.sides):
            if sd is None: continue
            for c, fn in sd.items:
                if c not in ("hold", "until"):
                    fn(); self.G.tick(c)
            sd.items = []


def zip_longest_(a, b):
    out = []
    for i in range(max(len(a), len(b))):
        out.append(tuple(x[i] for x in (a, b) if i < len(x)))
    return out
```

```python
import struct, os
EXP = os.environ.get("EXP", "").split(",")
from gen_common import *
from sched import *
from gen_k01 import prologue, prologue2, code_prefetch

TS = 81920
TP = 20480
V_L16 = 7
V_LB = (7, 4, 5)
V_FLG = 9
V_N, V_PRB = 10, 11
V_XFP, V_XFS = 12, 13
V_RDP, V_RDS = 14, 15
V_OUP, V_OUS = 16, 17
V_STW, V_STR = 18, 19
V_CS = 20
V_XR = 32
V_ST = 44
V_TMP = 56
RA, RB, TB, SP = 80, 128, 176, 208
A_Y = 240
A_ONES = 252
LOG2E = 1.4426950408889634
NL2E = hex(struct.unpack("<I", struct.pack("<f", -LOG2E))[0])
S_TAG = S_NONCE
V_STB = 244
SF = 208

def hq(i):
    return RA + 4 * i if i < 12 else SP + 4 * (i - 12) if i < 24 else TB + 4 * (i - 24)
def lds_addr(off): return V_LB[off >> 16], off & 0xffff

def gen_k2(dbg=False, own_prefetch=True):
    k = K("k2_kernel", 256, 256, lds=2 * TS, vgpr=256, agpr=256, sgpr=102)
    k.stb = None; k.tl = dbg
    END = "Lk2_end"
    G = Glob(k); D = Direct(k, G); D0 = Direct(k)
    slow = []
    k(f"""
    s_cmp_ge_u32 s2, 256
    s_cbranch_scc1 {END}
    s_load_dwordx2 s[8:9], s[0:1], 0
    s_load_dwordx2 s[16:17], s[0:1], 80
    s_load_dwordx2 s[20:21], s[0:1], 88
    s_load_dwordx2 s[24:25], s[0:1], 96
    """)
    prologue2(k)
    k.ts("start")
    NQ, NY, NS, NX, NN, NT = 80, 92, 104, 108, 120, 132
    k(f"""
    s_and_b32 s3, s2, 7                     ; x
    s_lshr_b32 s4, s2, 3                    ; r
    s_lshr_b32 s41, s3, 2
    s_lshl_b32 s41, s41, 3
    s_and_b32 s5, s4, 7
    s_add_u32 s41, s41, s5                  ; cl
    s_and_b32 s42, s3, 3
    s_lshl_b32 s42, s42, 2
    s_lshr_b32 s5, s4, 3
    s_add_u32 s42, s42, s5
    s_lshl_b32 s45, s41, 4
    s_add_u32 s45, s45, s42                 ; L = cl*16+i
    s_lshl_b32 s3, s45, 3
    v_and_b32 v{NT}, 7, v0                  ; tk
    v_add_u32 v{NT+1}, s3, v{NT}            ; token
    v_lshrrev_b32 v{NT+2}, 3, v0            ; Gl
    v_mul_u32_u24 v{NT+3}, 1280, v{NT+1}
    v_lshl_add_u32 v{NT+3}, v{NT+2}, 4, v{NT+3}   ; q voffset
    v_lshlrev_b32 v{NT+4}, 3, v{NT+1}             ; token*8
    v_lshl_add_u32 v{NT+5}, v{NT+2}, 15, v{NT+4}  ; y voffset
    s_mov_b32 s10, {NB}
    s_mov_b32 s11, 0x20000
    s_cmp_lt_u32 s{S_WAVE}, 2
    s_cselect_b32 s28, 0, 0x70000000
    s_add_u32 s29, s28, {WS_Y4 + 128*16384}
    s_add_u32 s30, s28, {WS_Y4 + 129*16384}
    s_mov_b32 s3, {WS_Y4}
    s_mov_b32 s4, {WS_Y4 + 16384}
    s_mov_b32 s5, {WS_Y4 + 64*16384}
    s_mov_b32 s6, {WS_Y4 + 65*16384}
    s_mov_b32 s7, {WS_SQ}
    s_waitcnt lgkmcnt(0)
    """)
    k(f"""
    buffer_load_dwordx2 v[{NY}:{NY+1}], v{NT+5}, s[24:27], s3 offen
    buffer_load_dwordx2 v[{NY+2}:{NY+3}], v{NT+5}, s[24:27], s4 offen
    buffer_load_dwordx4 v[{NQ}:{NQ+3}], v{NT+3}, s[8:11], 0 offen
    buffer_load_dwordx2 v[{NS}:{NS+1}], v{NT+4}, s[24:27], s7 offen
    """, tag=("nq", 0))
    k(f"""
    buffer_load_dwordx2 v[{NY+4}:{NY+5}], v{NT+5}, s[24:27], s5 offen
    buffer_load_dwordx2 v[{NY+6}:{NY+7}], v{NT+5}, s[24:27], s6 offen
    buffer_load_dwordx4 v[{NQ+4}:{NQ+7}], v{NT+3}, s[8:11], 0 offen offset:512
    """, tag=("nq", 1))
    k(f"""
    buffer_load_dwordx2 v[{NY+8}:{NY+9}], v{NT+5}, s[24:27], s29 offen
    buffer_load_dwordx2 v[{NY+10}:{NY+11}], v{NT+5}, s[24:27], s30 offen
    buffer_load_dwordx4 v[{NQ+8}:{NQ+11}], v{NT+3}, s[8:11], s28 offen offset:1024
    """, tag=("nq", 2))
    sv = list(k.vm); nonce_publish(k, V_TMP); k.vm = sv
    k(f"""
    s_lshl_b32 s46, s42, 2
    s_add_u32 s46, s46, s{S_WAVE}
    s_mul_i32 s46, s46, {60*1024}
    s_add_u32 s46, s46, {WS_W1P}
    v_lshlrev_b32 v{V_L16}, 4, v2
    """)

    def w1_frag(f):
        if f % 4 == 0 or k.last_w != ("w1", f - 1): k(f"s_add_u32 s62, s46, {1024*(f & ~3)}")
        k.last_w = ("w1", f)
        k(f"buffer_load_dwordx4 a[{4*f}:{4*f+3}], v{V_L16}, s[24:27], s62 offen offset:{1024*(f%4)}", tag=("w1", f))
    def w2_frag(f):
        if f % 4 == 0 or k.last_w != ("w2", f - 1): k(f"s_add_u32 s62, s47, {1024*(f & ~3)}")
        k.last_w = ("w2", f)
        k(f"buffer_load_dwordx4 a[{4*f}:{4*f+3}], v{V_L16}, s[24:27], s62 offen offset:{1024*(f%4)}", tag=("w2", f))
    k.last_w = None
    def tok_dma(X, s, ks):
        if ks % 4 == 0: k(f"s_add_u32 m0, s49, {s*TS + ks*1024}\ns_add_u32 s38, s48, {X + s*4*TP + ks*1024}")
        k(f"buffer_load_dwordx4 v{V_L16}, s[24:27], s38 offen offset:{1024*(ks%4)} sc1 lds", tag=("tok", s, ks))
    def push_w1(f, cond=None): G.push(("w1", f), lambda: w1_frag(f), cond)
    def push_w2(f, cond=None): G.push(("w2", f), lambda: w2_frag(f), cond)
    def push_tok(X, s, ks): G.push(("tok", s, ks), lambda: tok_dma(X, s, ks))

    for f in range(60): push_w1(f)
    G.burst(6)
    D0(f"""
    s_mov_b32 s18, {NB}
    s_mov_b32 s19, 0x20000
    s_lshr_b32 s43, s42, 3                  ; rh
    s_and_b32 s44, s42, 7                   ; ct2
    s_mul_i32 s47, s44, 48
    s_mul_i32 s5, s{S_WAVE}, 12
    s_add_u32 s47, s47, s5
    s_mul_i32 s47, s47, 5120
    s_add_u32 s47, s47, {WS_W2P}
    s_lshl_b32 s37, s41, 3
    s_add_u32 s37, s37, s{S_WAVE}
    s_mul_i32 s48, s37, {TP}
    s_mul_i32 s49, s{S_WAVE}, {TP}
    v_add_u32 v{V_LB[1]}, 0x10000, v{V_L16}
    v_add_u32 v{V_LB[2]}, 0x20000, v{V_L16}
    v_lshlrev_b32 v{V_FLG}, {FLS}, v2
    v_and_b32 v{V_N}, 15, v2
    v_lshrrev_b32 v{V_TMP+2}, 4, v2         ; q
    v_lshlrev_b32 v{V_PRB}, 10, v{V_N}
    v_add_u32 v{V_PRB}, 1020, v{V_PRB}
    s_lshl_b32 s52, s41, 3
    s_lshl_b32 s5, s43, 1
    s_add_u32 s52, s52, s5
    s_and_b32 s5, s{S_WAVE}, 1
    s_add_u32 s53, s52, s5                  ; T (stream 0)
    s_lshr_b32 s54, s{S_WAVE}, 1            ; P
    s_mul_i32 s5, s44, 10
    s_lshl_b32 s6, s54, 2
    s_add_u32 s6, s6, s5
    v_add_u32 v{V_TMP}, s6, v{V_TMP+2}
    s_mul_i32 s7, s53, {TP}
    v_lshl_add_u32 v{V_TMP+3}, v{V_N}, 4, s7
    v_lshl_add_u32 v{V_XFP}, v{V_TMP}, 8, v{V_TMP+3}
    s_lshl_b32 s7, s53, 4
    v_add_u32 v{V_TMP+1}, s7, v{V_N}        ; token
    v_mul_u32_u24 v{V_OUS}, 1280, v{V_TMP+1}
    v_lshl_add_u32 v{V_OUP}, v{V_TMP}, 4, v{V_OUS}
    v_lshlrev_b32 v{V_TMP+1}, 3, v{V_TMP+1}
    v_lshl_add_u32 v{V_TMP+4}, v{V_TMP}, 15, v{V_TMP+1}
    s_lshl_b32 s5, s5, 1
    s_add_u32 s5, s5, 16
    v_add_u32 v{V_TMP}, s5, v{V_TMP+2}
    v_lshl_add_u32 v{V_TMP+5}, v{V_TMP}, 14, v{V_TMP+1}
    v_lshl_add_u32 v{V_OUS}, v{V_TMP}, 3, v{V_OUS}
    v_lshrrev_b32 v{V_TMP+6}, 1, v{V_TMP}
    v_lshl_add_u32 v{V_XFS}, v{V_TMP+6}, 8, v{V_TMP+3}
    v_and_b32 v{V_TMP+6}, 1, v{V_TMP}
    v_lshl_add_u32 v{V_XFS}, v{V_TMP+6}, 3, v{V_XFS}
    s_and_b32 s5, s{S_WAVE}, 1
    s_mul_i32 s5, s5, 5120
    s_lshl_b32 s6, s54, 11
    s_add_u32 s6, s6, s5
    v_add_u32 v{V_RDP}, s6, v{V_L16}
    s_add_u32 s5, s5, 4096
    v_add_u32 v{V_RDS}, s5, v{V_L16}
    s_lshl_b32 s5, s44, 1
    s_add_u32 s5, s5, s54
    s_lshl_b32 s5, s5, 7
    s_lshl_b32 s39, s53, 11
    s_add_u32 s5, s5, s39
    v_lshlrev_b32 v{V_TMP}, 3, v{V_N}
    v_add_u32 v{V_STW}, s5, v{V_TMP}
    v_lshl_add_u32 v{V_STR}, v{V_TMP+2}, 9, v{V_TMP}
    s_mov_b32 s55, 0x3f803f80
    v_mov_b32 v{V_TMP}, s55
    v_accvgpr_write_b32 a{A_ONES}, v{V_TMP}
    v_accvgpr_write_b32 a{A_ONES+1}, v{V_TMP}
    v_accvgpr_write_b32 a{A_ONES+2}, v{V_TMP}
    v_accvgpr_write_b32 a{A_ONES+3}, v{V_TMP}
    s_lshl_b32 s36, s41, 19
    s_lshl_b32 s5, s42, 12
    s_add_u32 s36, s36, s5
    s_lshl_b32 s5, s{S_WAVE}, 10
    s_add_u32 s36, s36, s5
    s_lshl_b32 s35, s52, 16
    s_lshl_b32 s5, s{S_WAVE}, 14
    s_add_u32 s35, s35, s5
    v_lshrrev_b32 v{NT+6}, 4, v{NT+1}
    v_mul_u32_u24 v{NT+6}, {TP}, v{NT+6}
    v_and_b32 v{NT+7}, 15, v{NT+1}
    v_lshl_add_u32 v{NT+6}, v{NT+7}, 4, v{NT+6}
    v_lshl_add_u32 v{NT+6}, v{NT+2}, 8, v{NT+6}
    s_lshl_b32 s5, s{S_WAVE}, 6
    v_lshlrev_b32 v{NT+7}, 3, v{NT}
    v_add_u32 v{NT+8}, s5, v{NT+7}
    """)
    k("s_cmp_eq_u32 s54, 0\ns_cselect_b32 s34, 1.0, 0")
    k(f"buffer_load_dwordx2 v[{V_TMP+22}:{V_TMP+23}], off, s[{S_DBG}:{S_DBG+3}], 0 sc1", tag="nonce")

    def xor_reduce(e, regs, t):
        for op in ("v_permlane16_swap_b32", "v_permlane32_swap_b32"):
            for i, r in enumerate(regs): e(f"v_mov_b32 v{t+i}, v{r}")
            for i, r in enumerate(regs): e(f"{op} v{r}, v{t+i}")
            for i, r in enumerate(regs): e(f"v_add_f32 v{r}, v{r}, v{t+i}")
    def flag_off(phase): return WS_FL + ((2 + phase) * 256 << FLS)
    def flag_after_barrier(phase):
        l = k.newlabel("Lsg")
        k(f"s_cmp_lg_u32 s{S_WAVE}, 0\ns_cbranch_scc1 {l}")
        k(f"s_lshl_b32 s3, s45, {FLS}\ns_add_u32 s3, s3, {flag_off(phase)}")
        sv = list(k.vm)
        flag_set(k, V_TMP + 22, 3)
        k.vm = sv
        k(f"{l}:")
        k.ts(f"sig{phase}")
    def signal(e, phase, tag):
        e.wait_vm(tag)
        e.atomic(lambda: (k("s_barrier"), flag_after_barrier(phase)))
    def await_(e, phase, then=None):
        def f():
            l = k.newlabel("Law")
            k.ts(f"aw{phase}_in")
            k(f"s_cmp_lg_u32 s{S_WAVE}, 0\ns_cbranch_scc1 {l}")
            k(f"s_lshl_b32 s3, s41, {4+FLS}\ns_add_u32 s3, s3, {flag_off(phase)}")
            sv = list(k.vm)
            flag_wait(k, V_TMP + 22, V_FLG, 3, 16, END)
            k.vm = sv
            k(f"{l}:\ns_barrier")
            k.ts(f"aw{phase}_out")
            if then: then()
        e.atomic(f)

    t = NT + 10
    S1, S2 = NT + 20, NT + 21
    k.ts("n_in")
    for rho in range(3):
        k.wait_vm(("nq", rho))
        for d in range(4):
            q, y, x = NQ + 4 * rho + d, NY + 4 * rho + d, NX + 4 * rho + d
            unpack_lo(D0, t, q); unpack_hi(D0, t + 1, q); unpack_lo(D0, t + 2, y); unpack_hi(D0, t + 3, y)
            D0(f"v_pk_fma_f32 v[{t+4}:{t+5}], v[{t}:{t+1}], v[{NS}:{NS+1}], v[{NS}:{NS+1}] op_sel:[0,1,0] op_sel_hi:[1,1,0] neg_lo:[0,0,1] neg_hi:[0,0,1]")
            D0(f"v_pk_fma_f32 v[{t+4}:{t+5}], v[{t+4}:{t+5}], v[{t+2}:{t+3}], v[{t}:{t+1}]")
            D0(f"v_cvt_pk_bf16_f32 v{x}, v{t+4}, v{t+5}")
            first = rho == 0 and d == 0
            D0(f"v_dot2_f32_bf16 v{S1}, v{x}, s55, " + ("0" if first else f"v{S1}"))
            D0(f"v_dot2_f32_bf16 v{S2}, v{x}, v{x}, " + ("0" if first else f"v{S2}"))
        D0(f"s_add_u32 s3, {'s28' if rho == 2 else '0'}, {WS_X1 + 8192*rho}")
        D0(f"buffer_store_dwordx4 v[{NX+4*rho}:{NX+4*rho+3}], v{NT+6}, s[24:27], s3 offen sc1")
    for r in (S1, S2): D0(f"v_add_f32_dpp v{r}, v{r}, v{r} row_ror:8 row_mask:0xf bank_mask:0xf")
    xor_reduce(D0, [S1, S2], t)
    k(f"ds_write_b64 v{NT+8}, v[{S1}:{S2}]\ns_waitcnt lgkmcnt(0)\ns_barrier")
    for w in range(4): k(f"ds_read_b64 v[{t+2*w}:{t+2*w+1}], v{NT+7} offset:{64*w}")
    k(f"""
    s_waitcnt lgkmcnt(0)
    v_pk_add_f32 v[{t}:{t+1}], v[{t}:{t+1}], v[{t+2}:{t+3}]
    v_pk_add_f32 v[{t+4}:{t+5}], v[{t+4}:{t+5}], v[{t+6}:{t+7}]
    v_pk_add_f32 v[{S1}:{S2}], v[{t}:{t+1}], v[{t+4}:{t+5}]
    """)
    ln_scalars(k, S1, S2, t)
    k(f"v_mul_f32 v{S1}, v{S1}, v{S2}")
    for rho in range(3):
        for d in range(4):
            x, o = NX + 4 * rho + d, NN + 4 * rho + d
            unpack_lo(D0, t, x); unpack_hi(D0, t + 1, x)
            D0(f"v_pk_fma_f32 v[{t}:{t+1}], v[{t}:{t+1}], v[{S1}:{S2}], v[{S1}:{S2}] op_sel:[0,1,0] op_sel_hi:[1,1,0] neg_lo:[0,0,1] neg_hi:[0,0,1]")
            D0(f"v_cvt_pk_bf16_f32 v{o}, v{t}, v{t+1}")
        D0(f"s_add_u32 s3, {'s28' if rho == 2 else '0'}, {WS_XN + 8192*rho}")
        D0(f"buffer_store_dwordx4 v[{NN+4*rho}:{NN+4*rho+3}], v{NT+6}, s[24:27], s3 offen sc1", tag="xn")
    k.ts("n_out")
    lg = k.newlabel("Lng")
    k.wait_vm("nonce")
    k(f"v_readfirstlane_b32 s{S_NONCE}, v{V_TMP+22}\nv_readfirstlane_b32 s{S_NONCE+1}, v{V_TMP+23}")
    k(f"s_cmp_lg_u32 s{S_NONCE}, 0\ns_cbranch_scc1 {lg}")
    sv = list(k.vm); nonce_get(k, V_TMP + 22, END); k.vm = sv
    k(f"{lg}:")
    def y_loads():
        for s in range(2):
            k(f"s_mov_b32 s3, {WS_Y4 + s*512}\ns_mov_b32 s4, {WS_Y4 + s*512 + 16384}")
            r = A_Y + 6 * s
            k(f"buffer_load_dwordx2 a[{r}:{r+1}], v{V_TMP+4}, s[24:27], s3 offen")
            k(f"buffer_load_dwordx2 a[{r+2}:{r+3}], v{V_TMP+4}, s[24:27], s4 offen")
            k(f"buffer_load_dwordx2 a[{r+4}:{r+5}], v{V_TMP+5}, s[24:27], s3 offen")
    G.burst(6)
    def colsum(ks):
        out = []
        for mt in range(3):
            a = V_CS + 4 * mt
            c = "0" if ks == 0 else f"v[{a}:{a+3}]"
            out.append(f"v_mfma_f32_16x16x32_bf16 v[{a}:{a+3}], a[{12*ks+4*mt}:{12*ks+4*mt+3}], a[{A_ONES}:{A_ONES+3}], {c}")
        return out
    signal(D0, 4, "xn")
    G.burst(9)
    y_loads()
    NCS0 = 4; NCS1 = 10
    for ks in range(NCS0):
        G.need(("w1", 3 * ks + 2))
        for m in colsum(ks): k(m)

    def frag_reads(s, ks, p):
        out = []
        for tt in range(4):
            v, off = lds_addr(s * TS + tt * TP + ks * 1024)
            r = TB + 16 * p + 4 * tt
            out.append(f"ds_read_b128 v[{r}:{r+3}], v{v} offset:{off}")
        return out

    def g1(s, layer, sides, chunks, boost=None):
        acc = RA if s == 0 else RB
        sc = Sched(G, sides)
        starts = [0] + chunks[:-1]
        def sync_chunk(first):
            G.need(("tok", s, chunks[starts.index(first)] - 1))
            k("s_barrier")
            G.mark(("bar", layer, s, first))
        k.ts(f"g1_{s}_in")
        sync_chunk(0)
        k.ts(f"g1_{s}_c0")
        for rd in frag_reads(s, 0, 0): k(rd, tag=("fr", 0))
        for ks in range(20):
            p = ks & 1
            if ks + 1 in starts: sync_chunk(ks + 1)
            nxt = frag_reads(s, ks + 1, p ^ 1) if ks + 1 < 20 else []
            G.need(("w1", 3 * ks + 2))
            k.wait_lg(("fr", ks))
            mf = []
            for tt in range(4):
                for mt in range(3):
                    a = acc + 12 * tt + 4 * mt
                    c = "0" if ks == 0 else f"v[{a}:{a+3}]"
                    b = TB + 16 * p + 4 * tt
                    mf.append(f"v_mfma_f32_16x16x32_bf16 v[{a}:{a+3}], a[{12*ks+4*mt}:{12*ks+4*mt+3}], v[{b}:{b+3}], {c}")
            if layer == 0 and s == 0 and ks >= NCS1: mf += colsum(ks)
            for n, m in enumerate(mf):
                k(m)
                bud = 3 if (boost is not None and boost.items) else 2
                if nxt and n % 2 == 0:
                    k(nxt.pop(0), tag=("fr", ks + 1)); k(nxt.pop(0), tag=("fr", ks + 1)); bud -= 2
                if n == len(mf) - 1: G.mark(("ks", layer, s, ks)); bud -= 1
                sc.gap(bud)
            assert not nxt
        k.ts(f"g1_{s}_loop")
        sc.flush()
        k.forget(lambda t: isinstance(t, tuple) and (t[0] == "fr" or (t[0] == "tok" and t[1] == s) or (t[0] == "w1" and s == 1)))

    def stats_finish(e, s):
        t = V_TMP + 16
        S1, S2 = t, t + 1
        r = SF + 8 * s
        e.wait_vm(("st2", s))
        e(f"""
        v_add_f32 v{r}, v{r}, v{r+2}
        v_add_f32 v{r+1}, v{r+1}, v{r+3}
        v_add_f32 v{r+4}, v{r+4}, v{r+6}
        v_add_f32 v{r+5}, v{r+5}, v{r+7}
        v_add_f32 v{S1}, v{r}, v{r+4}
        v_add_f32 v{S2}, v{r+1}, v{r+5}
        """)
        xor_reduce(e, [S1, S2], t + 2)
        ln_scalars(e, S1, S2, t + 2)
        e(f"s_lshl_b32 s7, s{S_WAVE}, 7\nv_lshl_add_u32 v{t+2}, v{V_N}, 3, s7")
    def stats_share(e, s):
        t = V_TMP + 16
        S1, S2 = t, t + 1
        e(f"ds_write_b64 v{t+2}, v[{S1}:{S2}] offset:{1024*s}", tag=("stw", s))
        e(f"v_lshlrev_b32 v{t+3}, 3, v{V_N}")
        e.hold(2)
        e.wait_lg(("stw", s))
        e("s_barrier")
        for tt in range(4): e(f"ds_read_b64 v[{V_TMP+2*tt}:{V_TMP+2*tt+1}], v{t+3} offset:{1024*s + 128*tt}", tag=("str", s))
        e.hold(3)
        e.wait_lg(("str", s))
        for tt in range(4):
            m, rs = V_TMP + 2 * tt, V_TMP + 2 * tt + 1
            d = (V_ST if s == 0 else V_STB) + 3 * tt
            e(f"v_sub_f32 v{d}, 0, v{m}\nv_mul_f32 v{d+1}, {NL2E}, v{rs}\nv_mul_f32 v{d+2}, v{rs}, v{rs}\nv_rcp_f32 v{d+2}, v{d+2}")
    def st2_load(s):
        k(f"s_lshl_b32 s7, s37, 11\ns_add_u32 s7, s7, {WS_ST2 + s*4*2048}")
        for i in range(4):
            r = SF + 8 * s + 2 * i
            k(f"buffer_load_dwordx2 v[{r}:{r+1}], v{V_STR}, s[24:27], s7 offen offset:{128*i} sc1", tag=("st2", s))

    def bc(r): return f"v[{r & ~1}:{(r & ~1) + 1}]", r & 1
    def epi(e, s, H, layer, pk=False):
        acc = RA if s == 0 else RB
        e.ts(f"epi_{s}_in")
        e(f"v_mov_b32 v{V_TMP+11}, s{S_TAG}\nv_mov_b32 v{V_TMP+15}, s{S_TAG}")
        for tt in range(4):
            nm = (V_ST if s == 0 else V_STB) + 3 * tt; c1 = nm + 1; r2 = nm + 2
            o = V_TMP + 8 + 4 * (tt & 1)
            for mt in range(3):
                a = acc + 12 * tt + 4 * mt; cs = V_CS + 4 * mt; t = V_TMP + 4 * (mt & 1)
                if layer == 0:
                    for i in range(2): e(f"v_mul_f32 v{t+i}, {NL2E}, v{a+i}")
                    for i in range(2): e(f"v_exp_f32 v{t+i}, v{t+i}")
                    if pk: e(f"v_pk_mul_f32 v[{t+2}:{t+3}], v[{a}:{a+1}], v[{a+2}:{a+3}]\nv_pk_add_f32 v[{t}:{t+1}], v[{t}:{t+1}], 1.0 op_sel_hi:[1,0]")
                    else:
                        for i in range(2): e(f"v_mul_f32 v{t+2+i}, v{a+i}, v{a+2+i}")
                        for i in range(2): e(f"v_add_f32 v{t+i}, 1.0, v{t+i}")
                elif pk:
                    o1, b1 = bc(nm); o2, b2 = bc(c1); o3, b3 = bc(r2)
                    for h in (0, 2): e(f"v_pk_fma_f32 v[{a+h}:{a+h+1}], {o1}, v[{cs+h}:{cs+h+1}], v[{a+h}:{a+h+1}] op_sel:[{b1},0,0] op_sel_hi:[{b1},1,1]")
                    e(f"v_pk_mul_f32 v[{t}:{t+1}], v[{a}:{a+1}], {o2} op_sel:[0,{b2}] op_sel_hi:[1,{b2}]")
                    for i in range(2): e(f"v_exp_f32 v{t+i}, v{t+i}")
                    e(f"v_pk_mul_f32 v[{t+2}:{t+3}], v[{a}:{a+1}], v[{a+2}:{a+3}]")
                    e(f"v_pk_fma_f32 v[{t}:{t+1}], v[{t}:{t+1}], {o3}, {o3} op_sel:[0,{b3},{b3}] op_sel_hi:[1,{b3},{b3}]")
                else:
                    for i in range(4): e(f"v_fma_f32 v{a+i}, v{nm}, v{cs+i}, v{a+i}")
                    for i in range(2): e(f"v_mul_f32 v{t+i}, v{a+i}, v{c1}")
                    for i in range(2): e(f"v_exp_f32 v{t+i}, v{t+i}")
                    for i in range(2): e(f"v_mul_f32 v{t+2+i}, v{a+i}, v{a+2+i}")
                    for i in range(2): e(f"v_fma_f32 v{t+i}, v{t+i}, v{r2}, v{r2}")
                for i in range(2): e(f"v_rcp_f32 v{t+i}, v{t+i}")
                if pk: e(f"v_pk_mul_f32 v[{t+2}:{t+3}], v[{t+2}:{t+3}], v[{t}:{t+1}]")
                else:
                    for i in range(2): e(f"v_mul_f32 v{t+2+i}, v{t+2+i}, v{t+i}")
                e(f"v_cvt_pk_bf16_f32 v{o+mt}, v{t+2}, v{t+3}")
            e(f"s_add_u32 s6, s36, {H + (4*s + tt)*65536}")
            e(f"buffer_store_dwordx4 v[{o}:{o+3}], v{V_L16}, s[24:27], s6 offen sc1")
        e.ts(f"epi_{s}_out")
        e.atomic(lambda: G.mark(("epi", H, s)), 0)

    def h_probe_issue(s, H):
        k(f"s_add_u32 s33, s35, {H + 4*s*65536 + 65536}\ns_mov_b64 exec, 0xffff")
        k(f"buffer_load_dword v{V_TMP+22}, v{V_PRB}, s[24:27], s33 offen sc1", tag=("prb", s))
        k("s_mov_b64 exec, -1")
    def h_probe_check(s, H):
        l, l2 = k.newlabel("Lpr"), k.newlabel("Lpo")
        k.ts(f"prb{s}_in")
        k.wait_vm(("prb", s))
        sv = list(k.vm)
        k(f"""
        s_mov_b64 exec, 0xffff
        s_branch {l2}
        {l}:
        s_sleep 2
        buffer_load_dword v{V_TMP+22}, v{V_PRB}, s[24:27], s33 offen sc1
        s_waitcnt vmcnt(0)
        s_sub_u32 s{S_SPIN}, s{S_SPIN}, 1
        s_cbranch_scc1 {END}
        {l2}:
        v_cmp_ne_u32 vcc, s{S_TAG}, v{V_TMP+22}
        s_cbranch_vccnz {l}
        s_mov_b64 exec, -1
        """)
        k.vm = sv
        k.ts(f"prb{s}_out")
    def h_load(s, H, i, sreg=None):
        pg, t2, w4 = i >> 3, (i >> 2) & 1, i & 3
        sr = sreg or 32
        if w4 == 0: k(f"s_add_u32 s{sr}, s35, {H + (4*s + t2)*65536 + pg*4096}")
        r = hq(i)
        k(f"buffer_load_dwordx4 v[{r}:{r+3}], v{V_L16}, s[24:27], s{sr} offen offset:{1024*w4} sc1", tag=("h", s, i))
    def h_cmp(e, pg):
        for i in range(8): e(f"v_cmp_ne_u32 s[{72+2*i}:{73+2*i}], s{S_TAG}, v{hq(8*pg+i)+3}")
        for a, b in ((72, 74), (76, 78), (80, 82), (84, 86), (72, 76), (80, 84)):
            e(f"s_or_b64 s[{a}:{a+1}], s[{a}:{a+1}], s[{b}:{b+1}]")
    def h_check(e, s, H, pg):
        e.atomic(lambda: G.need(("h", s, 8 * pg + 7)), 1)
        h_cmp(e, pg)
        ls, lr = k.newlabel("Lhs"), k.newlabel("Lhr")
        e.atomic(lambda: k(f"s_or_b64 s[72:73], s[72:73], s[80:81]\ns_cbranch_scc1 {ls}\n{lr}:"))
        def slowpath():
            k.hist = []
            k(f"{ls}:\ns_nop 7")
            for i in range(8): h_load(s, H, 8 * pg + i, 88)
            k(f"s_waitcnt vmcnt(0)\ns_sub_u32 s{S_SPIN}, s{S_SPIN}, 1\ns_cbranch_scc1 {END}")
            h_cmp(D0, pg)
            k(f"s_or_b64 s[72:73], s[72:73], s[80:81]\ns_cbranch_scc1 {ls}\ns_branch {lr}")
        slow.append(slowpath)
        for t2 in range(2):
            for g in range(3):
                e(f"v_mov_b32 v{hq(8*pg+4*t2+g)+3}, v{hq(8*pg+4*t2+3)+g}")
    def push_h(s, H, layer, lo, hi):
        for i in range(lo, hi):
            if s == 1: cond = ("hfree", layer, i >> 3)
            elif i >= 24: cond = ("ks", layer, 1, 19)
            elif i >= 21 and layer == 1: cond = ("epi", H, 1)
            else: cond = None
            G.push(("h", s, i), (lambda s=s, i=i: h_load(s, H, i)), cond)

    def g2(s, H, layer, sides, at=None):
        at = at or {}
        acc = RB
        h_check(D, s, H, 0)
        k.ts(f"g2_{s}_go")
        n = 0
        for pg in range(4):
            chk = None
            if pg < 3:
                chk = Rec(k); chk.hold(16); h_check(chk, s, H, pg + 1)
            sc = Sched(G, [chk] + sides)
            for g in range(3):
                ksl = 3 * pg + g
                G.need(("w2", 5 * ksl + 4))
                for t2 in range(2):
                    for mt in range(5):
                        a = acc + 20 * t2 + 4 * mt; w = 4 * (5 * ksl + mt); b = hq(8 * pg + 4 * t2 + g)
                        c = "0" if ksl == 0 else f"v[{a}:{a+3}]"
                        k(f"v_mfma_f32_16x16x32_bf16 v[{a}:{a+3}], a[{w}:{w+3}], v[{b}:{b+3}], {c}")
                        if t2 == 1 and mt == 4:
                            G.mark(("ksl", layer, s, ksl))
                            if g == 2: G.mark(("hfree", layer, 4 * s + pg))
                        n += 1
                        if n in at: at[n]()
                        else: sc.gap(2)
            sc.flush([chk])
        k.ts(f"g2_{s}_loop")
        Sched(G, sides).flush()
        k.forget(lambda t: isinstance(t, tuple) and ((t[0] == "h" and t[1] == s) or (t[0] == "w2" and s == 1)))

    def red(e, s, at_barrier=None):
        R = RB
        e(f"s_mul_i32 s3, s{S_WAVE}, 10240\ns_add_u32 s3, s3, {s*TS}\nv_add_u32 v{V_TMP}, s3, v{V_L16}")
        for t in range(10): e(f"ds_write_b128 v{V_TMP}, v[{R+4*t}:{R+4*t+3}] offset:{1024*t}", tag=("rw", s))
        e(f"v_add_u32 v{V_TMP+1}, {s*TS}, v{V_RDP}\nv_add_u32 v{V_TMP+2}, {s*TS}, v{V_RDS}")
        e.wait_lg(("rw", s))
        if at_barrier: e.wait_vm(at_barrier[1])
        e("s_barrier")
        for j in range(3):
            for wp in range(4):
                r = R + 16 * j + 4 * wp
                av = V_TMP + 1 if j < 2 else V_TMP + 2
                e(f"ds_read_b128 v[{r}:{r+3}], v{av} offset:{10240*wp + (1024*j if j < 2 else 0)}", tag=("rd", s, j))
        if at_barrier: flag_after_barrier(at_barrier[0])
        e.wait_vm("x4")
        def add4(d, a, b):
            e(f"v_pk_add_f32 v[{d}:{d+1}], v[{a}:{a+1}], v[{b}:{b+1}]\nv_pk_add_f32 v[{d+2}:{d+3}], v[{a+2}:{a+3}], v[{b+2}:{b+3}]")
        for j in range(3):
            r = R + 16 * j; xr = V_XR + 6 * s + 2 * j; t = V_TMP + 4
            for i in range(4): unpack(e, t + i, xr + (i >> 1), i & 1)
            e.wait_lg(("rd", s, j))
            add4(r, r, r + 4); add4(r + 8, r + 8, r + 12); add4(r, r, r + 8)
            round2(e, r, r + 1, r + 4); round2(e, r + 2, r + 3, r + 5)
            add4(r, r, t)
            e(f"v_cvt_pk_bf16_f32 v{xr}, v{r}, v{r+1}\nv_cvt_pk_bf16_f32 v{xr+1}, v{r+2}, v{r+3}")
        e.ts(f"red{s}")

    def x1_loads():
        for s in range(2):
            k(f"s_mov_b32 s63, {WS_X1 + s*4*TP}")
            r = V_XR + 6 * s
            k(f"buffer_load_dwordx4 v[{r}:{r+3}], v{V_XFP}, s[24:27], s63 offen sc1", tag="x4")
            k(f"buffer_load_dwordx2 v[{r+4}:{r+5}], v{V_XFS}, s[24:27], s63 offen sc1", tag="x4")

    def part_stats(e, s, ST, tag=None):
        S1, S2 = V_TMP + 16, V_TMP + 17
        xr = V_XR + 6 * s
        e(f"v_dot2_f32_bf16 v{S1}, v{xr}, s55, 0\nv_dot2_f32_bf16 v{S2}, v{xr}, v{xr}, 0")
        e(f"v_dot2_f32_bf16 v{S1+2}, v{xr+4}, s55, 0\nv_dot2_f32_bf16 v{S2+2}, v{xr+4}, v{xr+4}, 0")
        e(f"v_dot2_f32_bf16 v{S1}, v{xr+1}, s55, v{S1}\nv_dot2_f32_bf16 v{S2}, v{xr+1}, v{xr+1}, v{S2}")
        e(f"v_dot2_f32_bf16 v{S1+2}, v{xr+5}, s55, v{S1+2}\nv_dot2_f32_bf16 v{S2+2}, v{xr+5}, v{xr+5}, v{S2+2}")
        for d in (2, 3):
            e(f"v_dot2_f32_bf16 v{S1}, v{xr+d}, s55, v{S1}\nv_dot2_f32_bf16 v{S2}, v{xr+d}, v{xr+d}, v{S2}")
        e(f"v_fma_f32 v{S1}, v{S1+2}, s34, v{S1}\nv_fma_f32 v{S2}, v{S2+2}, s34, v{S2}")
        xor_reduce(e, [S1, S2], V_TMP + 18)
        e(f"v_min_u32 v{S1}, -2, v{S1}\nv_min_u32 v{S2}, -2, v{S2}")
        def st():
            k(f"s_mov_b32 s7, {ST + s*4*2048}\ns_mov_b64 exec, 0xffff")
            k(f"buffer_store_dwordx2 v[{S1}:{S2}], v{V_STW}, s[24:27], s7 offen sc1", tag=tag)
            k("s_mov_b64 exec, -1")
        e.atomic(st)

    def mid2(e, s, hold=30):
        t = V_TMP
        def issue():
            k(f"s_add_u32 s31, s39, {WS_ST + s*4*2048}")
            for i in range(4): k(f"buffer_load_dwordx2 v[{t+2*i}:{t+2*i+1}], v{V_STR}, s[24:27], s31 offen offset:{128*i} sc1", tag=("stp", s))
        def poll():
            l, l2 = k.newlabel("Lst"), k.newlabel("Lso")
            k.ts(f"mid2_{s}_in")
            k.wait_vm(("stp", s))
            sv = list(k.vm)
            k(f"s_branch {l2}\n{l}:\ns_sleep 2")
            for i in range(4): k(f"buffer_load_dwordx2 v[{t+2*i}:{t+2*i+1}], v{V_STR}, s[24:27], s31 offen offset:{128*i} sc1")
            k(f"""
            s_waitcnt vmcnt(0)
            s_sub_u32 s{S_SPIN}, s{S_SPIN}, 1
            s_cbranch_scc1 {END}
            {l2}:
            v_max3_u32 v{t+8}, v{t}, v{t+1}, v{t+2}
            v_max3_u32 v{t+9}, v{t+3}, v{t+4}, v{t+5}
            v_max3_u32 v{t+8}, v{t+6}, v{t+7}, v{t+8}
            v_max_u32 v{t+8}, v{t+8}, v{t+9}
            v_cmp_eq_u32 vcc, -1, v{t+8}
            s_cbranch_vccnz {l}
            """)
            k.vm = sv
            k.ts(f"mid2_{s}_got")
        e.atomic(issue)
        e.hold(hold)
        e.atomic(poll)
        e(f"""
        v_add_f32 v{t}, v{t}, v{t+2}
        v_add_f32 v{t+1}, v{t+1}, v{t+3}
        v_add_f32 v{t+4}, v{t+4}, v{t+6}
        v_add_f32 v{t+5}, v{t+5}, v{t+7}
        v_add_f32 v{t}, v{t}, v{t+4}
        v_add_f32 v{t+1}, v{t+1}, v{t+5}
        """)
        xor_reduce(e, [t, t + 1], t + 2)
        ln_scalars(e, t, t + 1, t + 2)
        e(f"v_mul_f32 v{t}, v{t}, v{t+1}\ns_mov_b32 s3, {WS_X3 + s*4*TP}")
        for j in range(3):
            xr = V_XR + 6 * s + 2 * j; yr = A_Y + 6 * s + 2 * j
            e(f"v_accvgpr_read_b32 v{t+2}, a{yr}\nv_accvgpr_read_b32 v{t+3}, a{yr+1}")
            for i in range(4): unpack(e, t + 4 + i, xr + (i >> 1), i & 1)
            for i in range(4): unpack(e, t + 8 + i, t + 2 + (i >> 1), i & 1)
            for i in range(4): e(f"v_fma_f32 v{t+12+i}, v{t+4+i}, v{t+1}, -v{t}")
            for i in range(4): e(f"v_fma_f32 v{t+12+i}, v{t+12+i}, v{t+8+i}, v{t+4+i}")
            e(f"v_cvt_pk_bf16_f32 v{xr}, v{t+12}, v{t+13}\nv_cvt_pk_bf16_f32 v{xr+1}, v{t+14}, v{t+15}")
            if j == 1: e(f"buffer_store_dwordx4 v[{xr-2}:{xr+1}], v{V_XFP}, s[24:27], s3 offen sc1")
            if j == 2: e(f"buffer_store_dwordx2 v[{xr}:{xr+1}], v{V_XFS}, s[24:27], s3 offen sc1")
        part_stats(e, s, WS_ST2, tag=("x3", s))

    def out_store(e, s):
        xr = V_XR + 6 * s
        e(f"""
        s_mov_b32 s3, {s*64*1280}
        buffer_store_dwordx4 v[{xr}:{xr+3}], v{V_OUP}, s[16:19], s3 offen
        buffer_store_dwordx2 v[{xr+4}:{xr+5}], v{V_OUS}, s[16:19], s3 offen
        """)

    def toks_front(X, s, lead=8):
        rest = G.bg; G.bg = []
        for ks in range(20): push_tok(X, s, ks)
        G.bg = G.bg[:lead] + [x for pr in zip_longest_(G.bg[lead:], rest) for x in pr]

    def first_tok():
        toks_front(WS_XN, 0)
        for ks in range(20): push_tok(WS_XN, 1, ks)
        G.push("x4", x1_loads)
    await_(D, 4, first_tok)
    G.burst(8)
    G.pace = 12
    for layer in range(2):
        H = WS_H1 if layer == 0 else WS_H2
        sa = Rec(k)
        if layer == 1:
            sa.until(("ks", 1, 0, 1))
            signal(sa, 1, ("x3", 1))
            stats_finish(sa, 0)
            sa.until(("bar", 1, 0, 5))
            stats_share(sa, 0)
            sa.until(("ks", 1, 0, 7))
            def tokB():
                st2_load(1)
                for ks in range(20): push_tok(WS_X3, 1, ks)
            await_(sa, 1, tokB)
            sa.hold(40)
            stats_finish(sa, 1)
            stats_share(sa, 1)
        g1(0, layer, [sa], [2, 5, 10, 15, 20])
        G.pace = 16
        epi(D, 0, H, layer, pk=True)
        sp = Rec(k)
        sp.until(("ks", layer, 1, 3))
        sp.atomic(lambda: h_probe_issue(0, H))
        sp.until(("ks", layer, 1, 6))
        def prb_a_chk():
            h_probe_check(0, H)
            rest = G.bg; G.bg = []
            nfree = 24 if layer == 0 else 21
            push_h(0, H, layer, 0, nfree)
            hh = G.bg; G.bg = []
            while hh or rest:
                G.bg += rest[:2] + hh[:1]; rest = rest[2:]; hh = hh[1:]
            push_h(0, H, layer, nfree, 32)
        sp.atomic(prb_a_chk)
        for f in range(60): push_w2(f, ("ks", layer, 1, (4 * f + 3) // 12))
        G.pace = 10
        g1(1, layer, [sp], [10, 20])
        G.pace = 12
        epi(D, 1, H, layer, pk=True)
        def prb_b_chk():
            h_probe_check(1, H); push_h(1, H, layer, 0, 32); G.pace = 8
        g2(0, H, layer, [], {32: lambda: h_probe_issue(1, H), 64: prb_b_chk})
        G.pace = 9
        red(D, 0)
        sm = Rec(k)
        if layer == 0:
            part_stats(D, 0, WS_ST)
            G.pace = 12
            sm.hold(12)
            mid2(sm, 0, 30)
            for f in range(24): push_w1(f, ("ksl", 0, 1, (4 * f + 3) // 20))
            g2(1, H, layer, [sm])
            for f in range(24, 60): push_w1(f)
            G.pace = 20
            red(D, 1, at_barrier=(0, ("x3", 0)))
            part_stats(D, 1, WS_ST)
            for ks in range(NCS0, NCS1):
                G.need(("w1", 3 * ks + 2))
                for m in colsum(ks): k(m)
            def tokA():
                toks_front(WS_X3, 0)
            await_(D, 0, tokA)
            G.burst(5)
            G.pace = 16
            mid2(D, 1)
            st2_load(0)
            G.pace = 12
        else:
            out_store(D, 0)
            G.pace = 12
            g2(1, H, layer, [])
            red(D, 1)
            out_store(D, 1)
    assert not G.bg, G.bg
    if dbg:
        k.ts_flush(24, WS_DBG + 65536)
        open("ts_names.txt", "w").write(" ".join(k.tsn))
    k("s_endpgm")
    for f in slow: f()
    k(f"{END}:")
    return k

if __name__ == "__main__":
    import sys
    from gen_k01 import gen_k01
    dbg = len(sys.argv) > 1
    k1 = gen_k01(dbg, "Lk2_end", 64000); k2 = gen_k2(dbg, own_prefetch=False)
    open(os.environ.get("OUT", "full.s"), "w").write(build([k1, k2], [k1, k2]))
    print("k01", k1.ninstr, k1.nnop, "k2", k2.ninstr, k2.nnop)
```

```python
import re

TRANS = ("v_exp_f32", "v_log_f32", "v_rcp_f32", "v_rsq_f32", "v_sqrt_f32", "v_sin_f32", "v_cos_f32", "v_rcp_iflag_f32")
_REG = re.compile(r"\b([vas])(\d+)\b|\b([vas])\[(\d+):(\d+)\]")

def regs_of(op):
    out = set()
    for m in _REG.finditer(op):
        if m.group(1):
            out.add((m.group(1), int(m.group(2))))
        else:
            for i in range(int(m.group(4)), int(m.group(5)) + 1):
                out.add((m.group(3), i))
    if re.search(r"\bvcc(_lo|_hi)?\b", op): out.add(("vcc", 0))
    if re.search(r"\bm0\b", op): out.add(("m0", 0))
    if re.search(r"\bexec(_lo|_hi)?\b", op): out.add(("exec", 0))
    return out

def split_ops(s):
    ops = []; depth = 0; cur = ""
    for ch in s:
        if ch == "[": depth += 1
        if ch == "]": depth -= 1
        if ch == "," and depth == 0:
            ops.append(cur.strip()); cur = ""
        else:
            cur += ch
    if cur.strip(): ops.append(cur.strip())
    return ops

class Ins:
    __slots__ = ("text", "mn", "kind", "wr", "rd", "passes", "srcc", "ab", "states", "dpp", "widestore", "sdata")
    def __init__(self, text):
        self.text = text
        t = text.split(";")[0].strip()
        parts = t.split(None, 1)
        mn = parts[0]; self.mn = mn
        rest = parts[1] if len(parts) > 1 else ""
        ops = split_ops(rest)
        self.wr = set(); self.rd = set(); self.passes = 0; self.srcc = set(); self.ab = set()
        self.states = 1; self.dpp = False; self.widestore = False; self.sdata = set()
        R = regs_of
        if mn == "s_nop":
            self.kind = "nop"; self.states = int(ops[0], 0) + 1
        elif mn.startswith("v_mfma"):
            self.kind = "mfma"
            self.passes = 8 if "32x32x16" in mn else 4
            self.wr = R(ops[0]); self.ab = R(ops[1]) | R(ops[2]); self.srcc = R(ops[3]); self.rd = self.ab | self.srcc
        elif mn.startswith("v_"):
            self.kind = "valu"
            self.dpp = ("_dpp" in mn) or ("quad_perm" in rest) or ("row_" in rest)
            if (mn.startswith("v_permlane") and "swap" in mn) or mn.startswith("v_swap"):
                self.wr = R(ops[0]) | R(ops[1]); self.rd = set(self.wr)
            elif mn.startswith("v_cmp"):
                self.wr = R(ops[0])
                for o in ops[1:]: self.rd |= R(o)
            elif mn.startswith(("v_add_co", "v_sub_co", "v_addc_co", "v_subb_co", "v_subrev_co")):
                self.wr = R(ops[0]) | R(ops[1])
                for o in ops[2:]: self.rd |= R(o)
            else:
                self.wr = R(ops[0])
                for o in ops[1:]: self.rd |= R(o)
                if mn.startswith(("v_fmac", "v_dot2c", "v_mac", "v_pk_fmac")) or self.dpp: self.rd |= self.wr
        elif mn.startswith("ds_"):
            self.kind = "ds"
            if mn.startswith(("ds_read", "ds_bpermute", "ds_permute", "ds_swizzle")):
                self.wr = R(ops[0])
                for o in ops[1:]: self.rd |= R(o)
            else:
                for o in ops: self.rd |= R(o)
        elif mn.startswith(("buffer_", "global_")):
            self.kind = "vmem"
            islds = bool(re.search(r"\blds\b", rest))
            if mn in ("buffer_wbl2", "buffer_inv"):
                pass
            elif "load" in mn and not islds:
                self.wr = R(ops[0])
                for o in ops[1:]: self.rd |= R(o)
            else:
                for o in ops: self.rd |= R(o)
                if islds: self.rd.add(("m0", 0))
                if "store" in mn and ("x3" in mn or "x4" in mn):
                    self.widestore = True
                    self.sdata = R(ops[0]) if mn.startswith("buffer") else R(ops[1])
                if "atomic" in mn and re.search(r"\bsc0\b", rest):
                    self.wr = R(ops[0])
        elif mn.startswith("s_"):
            self.kind = "salu"
            if mn.startswith(("s_waitcnt", "s_barrier", "s_branch", "s_cbranch", "s_sleep", "s_setprio", "s_endpgm", "s_cmp", "s_bitcmp")):
                for o in ops: self.rd |= R(o)
            else:
                if ops:
                    self.wr = R(ops[0])
                    for o in ops[1:]: self.rd |= R(o)
                if "saveexec" in mn: self.wr.add(("exec", 0))
        else:
            raise ValueError("unknown instr " + text)

def is_vec(r): return r[0] in ("v", "a")
def is_sc(r): return r[0] in ("s", "vcc")

def need(p, c):
    n = 0
    pv = {r for r in p.wr if is_vec(r)}
    if p.kind == "valu":
        if c.kind == "mfma" and pv & c.rd: n = max(n, 2)
        if c.kind == "valu":
            if p.mn.startswith(TRANS) and (pv & (c.rd | c.wr)): n = max(n, 1)
            if c.dpp and pv & c.rd: n = max(n, 2)
            if c.mn.startswith("v_permlane") and pv & c.rd: n = max(n, 2)
            if c.mn.startswith(("v_readfirstlane", "v_readlane")) and pv & c.rd: n = max(n, 1)
            if p.mn.startswith("v_dot") and (pv & (c.rd | c.wr)):
                n = max(n, 3)
            if "sdwa" in p.mn and pv & (c.rd | c.wr): n = max(n, 1)
        if p.mn.startswith(TRANS) and c.kind in ("ds", "vmem") and pv & c.rd: n = max(n, 1)
        if p.mn.startswith("v_dot") and c.kind in ("ds", "vmem", "mfma") and pv & c.rd: n = max(n, 3)
        ps = {r for r in p.wr if is_sc(r)}
        if ps:
            if c.kind == "valu" and ps & c.rd:
                n = max(n, 4 if c.mn.startswith(("v_readlane", "v_writelane")) else 2)
            if c.kind == "valu" and c.mn.startswith("v_cndmask") and ("vcc", 0) in ps: n = max(n, 2)
            if c.kind == "vmem" and ps & c.rd: n = max(n, 5)
            if c.kind == "salu" and ps & c.rd: n = max(n, 1)
    elif p.kind == "mfma":
        big = p.passes == 8
        if c.kind == "mfma":
            if pv & c.ab: n = max(n, 12 if big else 8)
            if pv & c.srcc:
                if not (c.srcc == pv and c.passes == p.passes): n = max(n, 10 if big else 6)
            if pv & c.wr and not (c.srcc == pv and c.passes == p.passes): n = max(n, 12 if big else 8)
        elif c.kind in ("valu", "ds", "vmem"):
            if pv & (c.rd | c.wr): n = max(n, 12 if big else 8)
            if c.kind == "valu" and (p.srcc & c.wr): n = max(n, 7 if big else 3)
            if c.kind in ("ds", "vmem") and (p.srcc & c.wr): n = max(n, 7 if big else 3)
    elif p.kind == "salu":
        if ("m0", 0) in p.wr and c.kind in ("vmem", "ds") and ("m0", 0) in c.rd: n = max(n, 1)
    elif p.kind == "vmem":
        if p.widestore and p.sdata & c.wr: n = max(n, 2)
    return n

class K:
    def __init__(self, name, grid, block, lds=0, vgpr=256, agpr=0, sgpr=102):
        self.name = name; self.grid = grid; self.block = block; self.lds = lds
        self.vgpr = vgpr; self.agpr = agpr; self.sgpr = sgpr
        self.lines = []
        self.hist = []
        self._lbl = 0
        self.vm = []
        self.lg = []
        self.nnop = 0
        self.issued = set()
        self.ninstr = 0
    def _emit(self, ln, tag=None):
        ins = Ins(ln)
        req = 0; dist = 0
        for p in reversed(self.hist):
            r = need(p, ins) - dist
            if r > req: req = r
            dist += p.states
            if dist > 14: break
        while req > 0:
            n = min(req, 16)
            nop = Ins(f"s_nop {n-1}")
            self.lines.append(f"    s_nop {n-1}"); self.hist.append(nop); req -= n; self.nnop += 1
        self.lines.append("    " + ln)
        self.hist.append(ins)
        self.ninstr += 1
        if len(self.hist) > 32: self.hist = self.hist[-32:]
        for (kind, n) in ins.wr | ins.rd:
            if kind == "v": assert n < self.vgpr, f"v{n} >= {self.vgpr}: {ln}"
            if kind == "a": assert n < self.agpr, f"a{n} >= {self.agpr}: {ln}"
            if kind == "s": assert n < self.sgpr, f"s{n}: {ln}"
        if ins.kind == "vmem": self.vm.append(tag)
        if ins.kind == "ds": self.lg.append(tag)
        if ins.kind in ("vmem", "ds") and tag is not None: self.issued.add(tag)
        if ins.mn == "s_waitcnt":
            m = re.search(r"vmcnt\((\d+)\)", ln)
            if m:
                n = int(m.group(1)); self.vm = self.vm[len(self.vm) - n:] if n < len(self.vm) and n > 0 else ([] if n == 0 else self.vm)
            m = re.search(r"lgkmcnt\((\d+)\)", ln)
            if m:
                n = int(m.group(1)); self.lg = self.lg[len(self.lg) - n:] if n < len(self.lg) and n > 0 else ([] if n == 0 else self.lg)
    def __call__(self, s, tag=None):
        for ln in s.strip("\n").split("\n"):
            ln = ln.strip()
            if not ln: continue
            if ln.startswith(";"):
                self.lines.append("    " + ln); continue
            if ln.endswith(":"):
                self.label(ln[:-1]); continue
            self._emit(ln, tag)
    def wait_vm(self, tag):
        assert tag in self.issued, f"wait_vm on never-issued tag {tag}"
        idx = [i for i, t in enumerate(self.vm) if t == tag]
        if not idx: return
        n = len(self.vm) - 1 - idx[-1]
        n = min(n, 63)
        self(f"s_waitcnt vmcnt({n})")
    def wait_lg(self, tag):
        assert tag in self.issued, f"wait_lg on never-issued tag {tag}"
        idx = [i for i, t in enumerate(self.lg) if t == tag]
        if not idx: return
        n = len(self.lg) - 1 - idx[-1]
        n = min(n, 15)
        self(f"s_waitcnt lgkmcnt({n})")
    def forget(self, pred):
        self.issued = {t for t in self.issued if not pred(t)}
    def label(self, l):
        self.lines.append(l + ":")
    def stamp(self, i):
        if getattr(self, "stb", None) is None: return
        self(f"s_memrealtime s[{self.stb+2*i}:{self.stb+2*i+1}]")
        self.nst = max(getattr(self, "nst", 0), i + 1)
    def stamp_flush(self, srd, soff_expr_reg, vtmp=0):
        if getattr(self, "stb", None) is None: return
        self("s_waitcnt lgkmcnt(0) vmcnt(0)")
        self.stamp(7)
        self("s_waitcnt lgkmcnt(0)")
        lbl = self.newlabel("Lst")
        self(f"v_cmp_eq_u32 vcc, 0, v0\ns_and_saveexec_b64 s[{self.stb+16}:{self.stb+17}], vcc\ns_cbranch_execz {lbl}")
        for i in range(8): self(f"v_mov_b32 v{8+i}, s{self.stb+2*i}")
        self(f"v_mov_b32 v1, 0\nbuffer_store_dwordx4 v[8:11], v1, s[{srd}:{srd+3}], s{soff_expr_reg} offen\nbuffer_store_dwordx4 v[12:15], v1, s[{srd}:{srd+3}], s{soff_expr_reg} offen offset:16")
        self(f"{lbl}:")
    def ts(self, name):
        if not getattr(self, "tl", False): return
        if not hasattr(self, "tsn"): self.tsn = []
        i = len(self.tsn)
        if i >= 63 and name != "end": return
        self.tsn.append(name)
        import os
        clk = "s_memtime" if os.environ.get("CYC") else "s_memrealtime"
        self(f"{clk} s[100:101]\ns_waitcnt lgkmcnt(0)\nv_writelane_b32 v1, s100, {i}")
    def ts_flush(self, srd, base):
        if not getattr(self, "tl", False): return
        self("s_waitcnt vmcnt(0)")
        self.ts("end")
        lbl = self.newlabel("Lts")
        self(f"s_cmp_lg_u32 s40, {getattr(self, 'tlwave', 0)}\ns_cbranch_scc1 {lbl}")
        self(f"s_lshl_b32 s100, s2, 8\ns_add_u32 s100, s100, {base}\nv_and_b32 v0, 63, v0\nv_lshlrev_b32 v0, 2, v0")
        self(f"buffer_store_dword v1, v0, s[{srd}:{srd+3}], s100 offen\n{lbl}:")
    def fence(self, n=12):
        self(f"s_nop {n-1}")
    def newlabel(self, p="L"):
        self._lbl += 1
        return f"{p}_{self.name}_{self._lbl}"
    def text(self):
        o = [f".globl {self.name}", ".p2align 8", f".type {self.name},@function", f"{self.name}:"]
        o += self.lines
        o.append("    s_endpgm")
        return "\n".join(o)
    def desc(self):
        acc = (self.vgpr + 3) // 4 * 4
        nfv = acc + self.agpr if self.agpr else self.vgpr
        return f""".p2align 6
.amdhsa_kernel {self.name}
  .amdhsa_next_free_vgpr {nfv}
  .amdhsa_next_free_sgpr {self.sgpr}
  .amdhsa_accum_offset {acc}
  .amdhsa_group_segment_fixed_size 0
  .amdhsa_kernarg_size 104
  .amdhsa_user_sgpr_count 2
  .amdhsa_user_sgpr_kernarg_segment_ptr 1
  .amdhsa_system_sgpr_workgroup_id_x 1
  .amdhsa_float_denorm_mode_32 3
  .amdhsa_float_denorm_mode_16_64 3
.end_amdhsa_kernel"""

HEADER = """; Kernarg layout for this problem (104 bytes, ptrs only, base s[0:1]):
"""

def build(launches, kernels):
    o = HEADER
    for k in launches:
        o += f"; @launch kernel={k.name} grid=({k.grid},1,1) block=({k.block},1,1) lds={k.lds}\n"
    o += '.amdgcn_target "amdgcn-amd-amdhsa--gfx950"\n.text\n'
    for k in kernels:
        o += k.text() + "\n"
    o += '.section .rodata,"a"\n'
    for k in kernels:
        o += k.desc() + "\n"
    return o
```

```python
from asmlib import *

WS_KT  = 0x0000000
WS_Y4  = 0x0300000
WS_W1P = 0x0600000
WS_W2P = 0x0A00000
WS_SQ  = 0x0C00000
WS_FL  = 0x0D00000
WS_X   = 0x1000000
WS_H   = 0x1600000
WS_S2  = 0x2300000
WS_S1  = 0x2400000
WS_FX  = 0x2500000
WS_FH  = 0x2600000
WS_DBG = 0x8000000
WS_SIZE = 0x10000000
NB = 2048 * 640 * 2
FLS = 8
SPIN = 4000000

def srd(k, d, lo, hi, nbytes):
    k(f"s_mov_b32 s{d}, s{lo}\ns_mov_b32 s{d+1}, s{hi}\ns_mov_b32 s{d+2}, {nbytes}\ns_mov_b32 s{d+3}, 0x20000")
def unpack_lo(k, d, s): k(f"v_lshlrev_b32 v{d}, 16, v{s}")
def unpack_hi(k, d, s): k(f"v_and_b32 v{d}, 0xffff0000, v{s}")
def unpack(k, d, s, half): (unpack_hi if half else unpack_lo)(k, d, s)
def round2(k, a, b, t):
    k(f"v_cvt_pk_bf16_f32 v{t}, v{a}, v{b}")
    unpack_lo(k, a, t); unpack_hi(k, b, t)

def ln_scalars(k, s1, s2, t):
    inv = "0x3acccccd"
    k(f"""
    v_mul_f32 v{s1}, {inv}, v{s1}
    v_mul_f32 v{s2}, {inv}, v{s2}
    v_fma_f32 v{s2}, -v{s1}, v{s1}, v{s2}
    v_max_f32 v{s2}, 0, v{s2}
    """)
    round2(k, s1, s2, t)
    k(f"""
    v_add_f32 v{s2}, 0x3727c5ac, v{s2}
    v_cvt_pk_bf16_f32 v{t}, v{s2}, v{s2}
    v_lshlrev_b32 v{s2}, 16, v{t}
    v_sqrt_f32 v{s2}, v{s2}
    v_cvt_pk_bf16_f32 v{t}, v{s2}, v{s2}
    v_lshlrev_b32 v{s2}, 16, v{t}
    v_rcp_f32 v{s2}, v{s2}
    """)

S_WS = 24
S_DBG = 20
S_WAVE = 40
S_NONCE = 56
S_SPIN = 58
S_EX = 60

def nonce_publish(k, vt):
    l = k.newlabel("Lnp")
    k(f"""
    s_or_b32 s59, s2, s{S_WAVE}
    s_cmp_lg_u32 s59, 0
    s_cbranch_scc1 {l}
    s_memrealtime s[{S_NONCE}:{S_NONCE+1}]
    s_waitcnt lgkmcnt(0)
    s_or_b32 s{S_NONCE}, s{S_NONCE}, 1
    v_mov_b32 v{vt}, s{S_NONCE}
    v_mov_b32 v{vt+1}, s{S_NONCE+1}
    s_mov_b64 exec, 1
    buffer_store_dwordx2 v[{vt}:{vt+1}], off, s[{S_DBG}:{S_DBG+3}], 0 sc1
    s_mov_b64 exec, -1
    {l}:
    """)

def nonce_get(k, vt, abort):
    l = k.newlabel("Lng")
    k(f"""
    {l}:
    buffer_load_dwordx2 v[{vt}:{vt+1}], off, s[{S_DBG}:{S_DBG+3}], 0 sc1
    s_waitcnt vmcnt(0)
    v_readfirstlane_b32 s{S_NONCE}, v{vt}
    v_readfirstlane_b32 s{S_NONCE+1}, v{vt+1}
    s_sub_u32 s{S_SPIN}, s{S_SPIN}, 1
    s_cbranch_scc1 {abort}
    s_cmp_eq_u32 s{S_NONCE}, 0
    s_cbranch_scc1 {l}
    """)

def flag_set(k, vt, soff):
    k(f"""
    v_mov_b32 v{vt}, s{S_NONCE}
    v_mov_b32 v{vt+1}, s{S_NONCE+1}
    s_mov_b64 exec, 1
    buffer_store_dwordx2 v[{vt}:{vt+1}], off, s[{S_WS}:{S_WS+3}], s{soff} sc1
    s_mov_b64 exec, -1
    """)

def flag_wait(k, vt, vaddr, soff, nlanes, abort):
    l = k.newlabel("Lfw")
    mask = (1 << nlanes) - 1
    if nlanes == 64: k("s_mov_b64 exec, -1")
    elif nlanes <= 32: k(f"s_mov_b64 exec, {hex(mask)}")
    else: k(f"s_mov_b32 exec_lo, -1\ns_mov_b32 exec_hi, {hex(mask >> 32)}")
    k(f"""
    {l}:
    buffer_load_dwordx2 v[{vt}:{vt+1}], v{vaddr}, s[{S_WS}:{S_WS+3}], s{soff} offen sc1
    s_waitcnt vmcnt(0)
    s_sub_u32 s{S_SPIN}, s{S_SPIN}, 1
    s_cbranch_scc1 {abort}
    v_cmp_ne_u64 vcc, s[{S_NONCE}:{S_NONCE+1}], v[{vt}:{vt+1}]
    s_cbranch_vccnz {l}
    s_mov_b64 exec, -1
    """)
```

```python
from gen_common import *

HCP = 4160
UROFF = 4 * HCP
CP = UROFF + 4608
import os
STF = " sc1"
TLBW = int(os.environ.get("TLBW", "0"))
HWAIT = True
CLK = False

def prologue(k, endlbl):
    k(f"""
    s_cmp_ge_u32 s2, 256
    s_cbranch_scc1 {endlbl}
    """)
    if k.stb is not None:
        for i in range(8): k.stamp(i)
    k(f"""
    s_load_dwordx16 s[64:79], s[0:1], 0
    s_load_dwordx4 s[80:83], s[0:1], 64
    s_load_dwordx2 s[20:21], s[0:1], 88
    s_load_dwordx2 s[24:25], s[0:1], 96
    v_lshlrev_b32 v3, 4, v0                 ; tid*16
    """)

def prologue2(k):
    k(f"""
    v_lshrrev_b32 v1, 6, v0
    v_and_b32 v2, 63, v0                    ; lane
    v_readfirstlane_b32 s{S_WAVE}, v1
    s_mov_b32 s50, 0x05040100
    s_mov_b32 s51, 0x07060302
    s_mov_b32 s{S_SPIN}, {SPIN}
    s_mov_b32 s22, 256
    s_mov_b32 s23, 0x20000
    s_mov_b32 s26, {WS_SIZE}
    s_mov_b32 s27, 0x20000
    """)

def code_prefetch(k, start, end, nbytes, vt):
    n16 = (nbytes + 16383) // 16384
    k(f"""
    s_getpc_b64 s[28:29]
    Lpc_{k.name}:
    s_add_u32 s28, s28, {start}-Lpc_{k.name}
    s_addc_u32 s29, s29, -1
    s_mov_b32 s30, {end}-{start}
    s_mov_b32 s31, 0x20000
    s_lshr_b32 s3, s2, 3
    s_and_b32 s3, s3, 3
    s_lshl_b32 s3, s3, 12
    """)
    for i in range(n16):
        k(f"buffer_load_dwordx4 v[{vt}:{vt+3}], v3, s[28:31], s3 offen")
        if i < n16 - 1: k("s_add_u32 s3, s3, 16384")

def phase1(k, endlbl):
    lskip = k.newlabel("Lp1")
    k(f"""
    s_and_b32 s41, s2, 7                    ; cb
    s_lshr_b32 s42, s2, 3                   ; rb
    v_lshrrev_b32 v4, 4, v0
    v_min_u32 v4, 9, v4                     ; Gl
    v_and_b32 v5, 15, v0                    ; tql
    s_lshl_b32 s3, s42, 4
    v_add_u32 v6, s3, v5                    ; tq
    v_mul_u32_u24 v7, 5120, v6
    s_mul_i32 s3, s41, 160
    v_lshl_add_u32 v7, v4, 4, v7
    v_add_u32 v7, s3, v7
    s_mov_b32 s5, 0x7fffff00
    v_subrev_u32 v56, 3840, v7
    v_subrev_u32 v57, 2560, v7
    v_subrev_u32 v58, 1280, v7
    v_min_u32 v56, s5, v56
    v_min_u32 v57, s5, v57
    v_min_u32 v58, s5, v58
    s_mul_i32 s3, s41, 640
    v_lshlrev_b32 v59, 6, v4
    v_add_u32 v59, s3, v59
    """)
    prologue2(k)
    k("s_waitcnt lgkmcnt(0)")
    srd(k, 8, 66, 67, NB); srd(k, 12, 68, 69, NB); srd(k, 16, 70, 71, 640 * 8)
    nonce_publish(k, 8)
    k.vm = []
    if TLBW:
        lt = k.newlabel("Ltw")
        k(f"""
        s_cmp_lg_u32 s{S_WAVE}, 3
        s_cbranch_scc1 {lt}
        s_load_dwordx2 s[36:37], s[0:1], 80
        v_lshlrev_b32 v8, {TLBW}, v2
        """)
        nst = (0x3000000 >> (TLBW + 6)) or 1
        k("s_mov_b32 s3, 0")
        for i in range(nst):
            k(f"buffer_load_dword v244, v8, s[24:27], s3 offen\ns_add_u32 s3, s3, {64 << TLBW}")
        k("s_mov_b32 s30, 2621440\ns_mov_b32 s31, 0x20000\nv_lshlrev_b32 v8, 16, v2")
        for p in (64, 72):
            k(f"s_mov_b32 s28, s{p}\ns_mov_b32 s29, s{p+1}\nbuffer_load_dword v244, v8, s[28:31], 0 offen")
        k("s_waitcnt lgkmcnt(0)\ns_mov_b32 s28, s36\ns_mov_b32 s29, s37\nbuffer_load_dword v244, v8, s[28:31], 0 offen")
        k("s_mov_b32 s30, 1966080")
        for p in (78, 80, 82):
            k(f"s_mov_b32 s28, s{p}\ns_mov_b32 s29, s{p+1}\nbuffer_load_dword v244, v8, s[28:31], 0 offen")
        k(f"s_branch {lskip}\n{lt}:")
        k.vm = []
    else:
        k(f"s_cmp_eq_u32 s{S_WAVE}, 3\ns_cbranch_scc1 {lskip}")
    k("""
    buffer_load_dwordx4 v[108:111], v59, s[16:19], 0 offen
    buffer_load_dwordx4 v[112:115], v59, s[16:19], 0 offen offset:16
    buffer_load_dwordx4 v[116:119], v59, s[16:19], 0 offen offset:32
    buffer_load_dwordx4 v[120:123], v59, s[16:19], 0 offen offset:48
    """, tag="sh")
    k("""
    buffer_load_dwordx4 v[76:79], v7, s[8:11], 0 offen
    buffer_load_dwordx4 v[80:83], v7, s[8:11], 0 offen offset:1280
    buffer_load_dwordx4 v[84:87], v7, s[8:11], 0 offen offset:2560
    buffer_load_dwordx4 v[88:91], v7, s[8:11], 0 offen offset:3840
    buffer_load_dwordx4 v[92:95], v7, s[12:15], 0 offen
    buffer_load_dwordx4 v[96:99], v7, s[12:15], 0 offen offset:1280
    buffer_load_dwordx4 v[100:103], v7, s[12:15], 0 offen offset:2560
    buffer_load_dwordx4 v[104:107], v7, s[12:15], 0 offen offset:3840
    buffer_load_dwordx4 v[64:67], v56, s[8:11], 0 offen
    buffer_load_dwordx4 v[68:71], v57, s[8:11], 0 offen
    buffer_load_dwordx4 v[72:75], v58, s[8:11], 0 offen
    """, tag="kv")
    k(f"""
    v_lshlrev_b32 v63, 15, v4               ; 2Gl*16384
    v_lshl_add_u32 v63, v6, 4, v63          ; + tq*16
    s_mul_i32 s3, s41, {20*16384}
    s_add_u32 s36, s3, {WS_KT}
    s_add_u32 s37, s3, {WS_KT + 8192}
    s_add_u32 s38, s3, {WS_KT + 16384}
    s_add_u32 s39, s3, {WS_KT + 24576}
    """)
    k.wait_vm("sh")
    SH = 124
    for p in range(4):
        for j in range(4):
            unpack(k, SH + 8 * p + 2 * j, 108 + 2 * (2 * p) + (j >> 1), j & 1)
            unpack(k, SH + 8 * p + 2 * j + 1, 108 + 2 * (2 * p + 1) + (j >> 1), j & 1)
    k("s_waitcnt vmcnt(0)")
    k.stamp(1)
    for p in range(4):
        for rho in range(7):
            unpack_lo(k, 8 + 2 * rho, 64 + 4 * rho + p); unpack_hi(k, 9 + 2 * rho, 64 + 4 * rho + p)
        for i in range(4):
            a = 32 + 2 * i
            unpack_lo(k, 30, 92 + 4 * i + p); unpack_hi(k, 31, 92 + 4 * i + p)
            k(f"v_pk_mul_f32 v[{a}:{a+1}], v[{8+2*i}:{9+2*i}], v[{SH+8*p+6}:{SH+8*p+7}]")
            for j in (2, 1, 0):
                rho = i + 3 - j
                k(f"v_pk_fma_f32 v[{a}:{a+1}], v[{8+2*rho}:{9+2*rho}], v[{SH+8*p+2*j}:{SH+8*p+2*j+1}], v[{a}:{a+1}]")
            k(f"v_pk_mul_f32 v[{a}:{a+1}], v[{a}:{a+1}], v[30:31]")
        for e in range(2):
            c = 2 * p + e
            k(f"v_cvt_pk_bf16_f32 v{40+2*c}, v{38+e}, v{36+e}\nv_cvt_pk_bf16_f32 v{41+2*c}, v{34+e}, v{32+e}")
        k(f"buffer_store_dwordx4 v[{40+4*p}:{43+4*p}], v63, s[24:27], s{36+p} offen sc1", tag="kts")
    k(f"{lskip}:")
    k.hist = []

def p1_signal(k, endlbl, nafter):
    lw = k.newlabel("Lcw"); l3 = k.newlabel("Lc3")
    k(f"""
    s_cmp_lg_u32 s{S_WAVE}, 3
    s_cbranch_scc1 {l3}
    """)
    sv = list(k.vm)
    nonce_get(k, 16, endlbl)
    k.vm = sv
    k(f"""
    {l3}:
    s_waitcnt vmcnt({nafter})
    s_barrier
    """)
    k.stamp(2)
    k(f"""
    s_cmp_lg_u32 s{S_WAVE}, 3
    s_cbranch_scc1 {lw}
    s_lshl_b32 s6, s41, 5
    s_add_u32 s6, s6, s42
    s_lshl_b32 s6, s6, {FLS}
    s_add_u32 s6, s6, {WS_FL}
    """)
    sv = list(k.vm)
    flag_set(k, 16, 6)
    k.vm = sv
    k(f"{lw}:")

def conv_role(k, endlbl):
    k(f"""
    s_mul_i32 s46, s41, 20
    s_add_u32 s46, s46, s42                 ; g4
    s_lshl_b32 s43, s46, 2
    s_add_u32 s43, s43, s{S_WAVE}
    s_lshl_b32 s4, s43, 12
    s_add_u32 s32, s72, s4
    s_addc_u32 s33, s73, 0
    s_mov_b32 s34, 4096
    s_mov_b32 s35, 0x20000
    v_lshlrev_b32 v60, 4, v2                ; lane*16
    v_subrev_u32 v61, 32, v60
    v_subrev_u32 v62, 16, v60
    v_min_u32 v61, s5, v61
    v_min_u32 v62, s5, v62
    """)
    k.vm = []
    lh3 = k.newlabel("Lh3")
    def hloads():
        for rho in range(4):
            w = 160 + 8 * rho
            k(f"buffer_load_dwordx4 v[{w}:{w+3}], v60, s[32:35], 0 offen offset:{1024*rho}\nbuffer_load_dwordx2 v[{w+4}:{w+5}], v60, s[32:35], 0 offen offset:{1024*rho+16}", tag="h")
        k("buffer_load_dwordx4 v[192:195], v61, s[32:35], 0 offen\nbuffer_load_dwordx2 v[196:197], v62, s[32:35], 0 offen", tag="h")
    hloads()
    k(f"""
    s_lshl_b32 s4, s43, 1
    s_and_b32 s4, s4, -4
    s_load_dword s44, s[74:75], s4          ; D pair
    s_mul_i32 s45, s{S_WAVE}, {CP}
    v_and_b32 v8, 15, v2                    ; n / m
    v_lshrrev_b32 v9, 4, v2                 ; kq / q
    """)
    p1_signal(k, endlbl, 10)
    k(f"""
    v_mov_b32 v12, 0
    v_mov_b32 v13, 0
    v_mov_b32 v14, 0
    v_mov_b32 v15, 0
    v_and_b32 v10, 31, v2
    v_lshlrev_b32 v10, 4, v10
    v_add_u32 v10, s45, v10
    ds_write_b128 v10, v[12:15] offset:{UROFF + 4096}
    v_add_u32 v18, 1, v8                    ; m+1
    v_and_b32 v19, 3, v18                   ; e
    v_sub_u32 v18, v18, v19
    v_lshl_add_u32 v18, v9, 3, v18
    v_lshlrev_b32 v18, 1, v18
    v_mul_u32_u24 v19, {HCP}, v19
    v_add3_u32 v228, v18, v19, s45          ; vA
    v_lshlrev_b32 v18, 5, v8
    v_sub_u32 v18, {UROFF + 480}, v18
    v_lshl_add_u32 v18, v9, 4, v18
    v_add_u32 v229, s45, v18                ; vB
    v_lshlrev_b32 v19, 3, v0
    v_sub_u32 v230, {UROFF + 4088 - 2048}, v19
    v_add_u32 v231, {2*CP}, v230
    v_lshlrev_b32 v232, 5, v8
    v_lshl_add_u32 v232, v9, 3, v232
    v_add_u32 v232, s45, v232
    v_lshlrev_b32 v233, 2, v0
    v_add_u32 v234, {2*CP}, v233
    v_lshlrev_b32 v235, {FLS}, v2
    v_add_u32 v236, s45, v60
    s_waitcnt lgkmcnt(0)
    s_and_b32 s4, s43, 1
    s_lshl_b32 s4, s4, 4
    s_lshr_b32 s44, s44, s4
    s_and_b32 s44, s44, 0xffff              ; D bits
    v_lshl_add_u32 v18, v9, 3, v8
    v_sub_u32 v18, 15, v18                  ; j*
    v_and_b32 v19, 1, v18
    v_lshlrev_b32 v19, 4, v19
    v_lshlrev_b32 v19, v19, s44
    v_lshrrev_b32 v18, 1, v18
    """)
    for e in range(4):
        k(f"v_cmp_eq_u32 vcc, {e}, v18\nv_cndmask_b32 v{224+e}, 0, v19, vcc")
    k("s_waitcnt vmcnt(0)")
    for rho in range(5):
        w = 160 + 8 * rho; off = 32 + 1024 * rho if rho < 4 else 0
        t = 64 + 12 * rho
        k(f"ds_write_b128 v236, v[{w}:{w+3}] offset:{off}")
        for i in range(4): k(f"v_alignbyte_b32 v{t+i}, v{w+i+1}, v{w+i}, 2")
        k(f"ds_write_b128 v236, v[{t}:{t+3}] offset:{off + HCP}")
        for i in range(4): k(f"v_mov_b32 v{t+4+i}, v{w+1+i}")
        k(f"ds_write_b128 v236, v[{t+4}:{t+7}] offset:{off + 2*HCP}")
        for i in range(4): k(f"v_alignbyte_b32 v{t+8+i}, v{w+i+2}, v{w+i+1}, 2")
        k(f"ds_write_b128 v236, v[{t+8}:{t+11}] offset:{off + 3*HCP}")
    lw = k.newlabel("Lcw")
    k(f"""
    s_lshl_b32 s47, s46, 14                 ; g4*16384
    s_add_u32 s36, s47, {WS_KT}
    s_lshl_b32 s7, s41, {5+FLS}
    s_add_u32 s7, s7, {WS_FL}
    s_cmp_lg_u32 s{S_WAVE}, 3
    s_cbranch_scc1 {lw}
    """)
    flag_wait(k, 16, 235, 7, 32, endlbl)
    k(f"{lw}:")
    k("s_barrier")
    k.stamp(3)
    k.vm = []
    for i in range(4):
        k(f"buffer_load_dwordx4 v[{208+4*i}:{211+4*i}], v3, s[24:27], s36 offen sc1", tag=("kt", i))
        if i < 3: k("s_add_u32 s36, s36, 4096")
    ACC = 32
    def bufA(p, b): return 64 + 64 * p + 4 * b
    def bufB(p, a): return 96 + 64 * p + 4 * a
    def rdA(r, x):
        a = bufA(r & 1, x)
        return [f"ds_read_b64 v[{a}:{a+1}], v228 offset:{512*x + 64*r}", f"ds_read_b64 v[{a+2}:{a+3}], v228 offset:{512*x + 64*r + 8}"]
    def rdB(r, x):
        b = bufB(r & 1, x)
        return [f"ds_read_b128 v[{b}:{b+3}], v229 offset:{512*(7-x) + 64*r}"]
    k("s_waitcnt lgkmcnt(0)")
    for x in range(8):
        for rd in rdA(0, x): k(rd)
    for i in range(4):
        k.wait_vm(("kt", i))
        for e in range(2):
            k(f"ds_write_b64 v{230 + (i>>1)}, v[{208+4*i+2*e}:{209+4*i+2*e}] offset:{e*CP + 2048*(1-(i&1))}")
    k("s_waitcnt lgkmcnt(0)\ns_barrier")
    k.stamp(4)
    k("s_waitcnt lgkmcnt(0)")
    pairs = sorted([(b, a) for b in range(8) for a in range(8) if a + b <= 7], key=lambda t: (max(t), t))
    pairs0 = sorted([(b, a) for b in list(range(8)) + ["D"] for a in range(8) if b == "D" or a + b <= 7], key=lambda t: t[1])
    for x in range(8):
        for rd in rdB(0, x): k(rd, tag=("r", 0, x))
    started = set()
    NR = 8
    for r in range(NR):
        nxt = []
        if r < NR - 1:
            for x in range(8): nxt += rdA(r + 1, x) + rdB(r + 1, x)
        p = r & 1
        plist = pairs0 if r == 0 else pairs
        for n, (b, a) in enumerate(plist):
            if r == 0:
                k.wait_lg(("r", 0, a))
            elif n == 0:
                k("s_waitcnt lgkmcnt(0)")
            i = a + b if b != "D" else a
            c = f"v[{ACC+4*i}:{ACC+4*i+3}]" if i in started else "0"
            started.add(i)
            areg = bufA(p, b) if b != "D" else 224
            k(f"v_mfma_f32_16x16x32_bf16 v[{ACC+4*i}:{ACC+4*i+3}], v[{areg}:{areg+3}], v[{bufB(p,a)}:{bufB(p,a)+3}], {c}")
            if r == 0 and n == 8: k.wait_lg(("r", 0, 7))
            if nxt and (r > 0 or n >= 8): k(nxt.pop(0), tag=("r", r + 1))
        while nxt: k(nxt.pop(0), tag=("r", r + 1))
    k.stamp(5)
    k(f"s_add_u32 s37, s47, {WS_Y4}")
    for t in range(8):
        a = ACC + 4 * t
        k(f"v_cvt_pk_bf16_f32 v{64+2*t}, v{a}, v{a+1}\nv_cvt_pk_bf16_f32 v{65+2*t}, v{a+2}, v{a+3}")
        k(f"ds_write_b64 v232, v[{64+2*t}:{65+2*t}] offset:{512*t}")
    k("s_waitcnt lgkmcnt(0)\ns_barrier")
    for i in range(4):
        for c in range(4): k(f"ds_read_b32 v{96+4*i+c}, v{233 if c < 2 else 234} offset:{(c&1)*CP + 1024*i}", tag=("ys", i))
    for i in range(4):
        Y = 96 + 4 * i; oy = 128 + 4 * i
        k.wait_lg(("ys", i))
        for tk in range(2):
            sel = "s51" if tk else "s50"
            k(f"v_perm_b32 v{oy+2*tk}, v{Y+1}, v{Y}, {sel}\nv_perm_b32 v{oy+2*tk+1}, v{Y+3}, v{Y+2}, {sel}")
        k(f"buffer_store_dwordx4 v[{oy}:{oy+3}], v3, s[24:27], s37 offen{STF}")
        if i < 3: k("s_add_u32 s37, s37, 4096")
    k.stamp(6)

def transp_lds(k, src, offs):
    for ci in range(8):
        sel = "s51" if ci & 1 else "s50"
        o = 192 + 4 * ci
        for e in range(4):
            k(f"v_perm_b32 v{o+e}, v{src+4*(2*e+1)+(ci>>1)}, v{src+4*(2*e)+(ci>>1)}, {sel}")
        av, off = offs[ci]
        k(f"ds_write_b128 v{av}, v[{o}:{o+3}] offset:{off}")

FRP = 1040
def helper_role(k, endlbl):
    l1, l2, l3, l4, l5, l6 = [k.newlabel("Lh") for _ in range(6)]
    k(f"""
    s_sub_u32 s43, s2, 160                  ; bw
    s_lshl_b32 s44, s43, 2
    s_add_u32 s44, s44, s{S_WAVE}           ; Wv
    v_and_b32 v8, 15, v2
    v_lshrrev_b32 v9, 4, v2                 ; kq
    v_lshlrev_b32 v238, 4, v2               ; lane*16
    s_mul_i32 s45, s{S_WAVE}, {16*FRP}
    v_add_u32 v239, s45, v238
    """)
    k.vm = []
    p1_signal(k, endlbl, 0)
    k.vm = []
    k(f"s_cmp_ge_u32 s43, 60\ns_cbranch_scc1 {l1}")
    srd(k, 8, 78, 79, 640 * 1536 * 2); srd(k, 16, 80, 81, 640 * 1536 * 2)
    k(f"""
    s_mul_i32 s52, s44, 171
    s_lshr_b32 s52, s52, 11
    s_mul_i32 s3, s52, 12
    s_sub_u32 s53, s44, s3                  ; fg
    s_mul_i32 s7, s52, {32*3072}
    s_lshl_b32 s3, s53, 8
    s_add_u32 s7, s7, s3
    v_mul_u32_u24 v16, {8*3072}, v9
    v_lshl_add_u32 v16, v8, 4, v16
    """)
    for j in range(8):
        k(f"buffer_load_dwordx4 v[{32+4*j}:{35+4*j}], v16, s[8:11], s7 offen")
        k(f"buffer_load_dwordx4 v[{64+4*j}:{67+4*j}], v16, s[16:19], s7 offen")
        if j < 7: k(f"s_add_u32 s7, s7, 3072")
    k(f"{l1}:\ns_cmp_lt_u32 s43, 36\ns_cbranch_scc1 {l2}")
    srd(k, 12, 82, 83, 1536 * 640 * 2)
    R = 96
    k(f"""
    s_sub_u32 s3, s44, 144
    s_mul_i32 s46, s3, 205
    s_lshr_b32 s46, s46, 10                 ; kstep
    s_mul_i32 s4, s46, 5
    s_sub_u32 s47, s3, s4                   ; og
    s_mul_i32 s3, s46, 171
    s_lshr_b32 s3, s3, 9                    ; ct
    s_mul_i32 s4, s3, 3
    s_sub_u32 s4, s46, s4                   ; g
    s_mul_i32 s5, s3, {96*1280}
    s_lshl_b32 s7, s47, 8
    s_add_u32 s5, s5, s7
    s_add_u32 s48, s5, 10240
    s_add_u32 s49, s5, 20480
    s_lshl_b32 s4, s4, 2
    v_add_u32 v10, s4, v9
    v_mul_u32_u24 v11, 171, v10
    v_lshrrev_b32 v11, 9, v11               ; w = rho/3
    v_mul_u32_u24 v12, 3, v11
    v_sub_u32 v12, v10, v12                 ; q'
    v_mul_u32_u24 v11, {24*1280}, v11
    v_lshl_add_u32 v11, v8, 4, v11
    v_mul_u32_u24 v15, 2560, v12
    v_add_u32 v15, v15, v11                 ; base1
    v_mul_u32_u24 v13, 10240, v12
    v_add_u32 v13, v13, v11
    v_add_u32 v13, {6*1280}, v13            ; base2
    buffer_load_dwordx4 v[{R}:{R+3}], v15, s[12:15], s5 offen
    buffer_load_dwordx4 v[{R+4}:{R+7}], v15, s[12:15], s5 offen offset:1280
    buffer_load_dwordx4 v[{R+8}:{R+11}], v15, s[12:15], s48 offen
    buffer_load_dwordx4 v[{R+12}:{R+15}], v15, s[12:15], s48 offen offset:1280
    buffer_load_dwordx4 v[{R+16}:{R+19}], v15, s[12:15], s49 offen
    buffer_load_dwordx4 v[{R+20}:{R+23}], v15, s[12:15], s49 offen offset:1280
    buffer_load_dwordx4 v[{R+24}:{R+27}], v13, s[12:15], s5 offen
    buffer_load_dwordx4 v[{R+28}:{R+31}], v13, s[12:15], s5 offen offset:1280
    {l2}:
    s_cmp_lt_u32 s43, 64
    s_cbranch_scc1 {l3}
    """)
    srd(k, 16, 64, 65, NB)
    k(f"""
    s_sub_u32 s3, s44, 256
    s_lshl_b32 s3, s3, 4
    v_lshrrev_b32 v7, 3, v2
    v_add_u32 v4, s3, v7                    ; row (h=0)
    v_mul_u32_u24 v5, 1280, v4
    v_and_b32 v6, 7, v2                     ; part
    v_lshl_add_u32 v5, v6, 4, v5
    s_movk_i32 s7, 10240
    """)
    for h in range(2):
        for i in range(10): k(f"buffer_load_dwordx4 v[{16+40*h+4*i}:{19+40*h+4*i}], v5, s[16:19], {'s7' if h else '0'} offen offset:{128*i}")
    k(f"""
    {l3}:
    s_waitcnt vmcnt(0)
    """)
    k.stamp(3)
    k(f"""
    s_cmp_ge_u32 s43, 60
    s_cbranch_scc1 {l4}
    v_mul_u32_u24 v17, {FRP}, v8
    v_lshl_add_u32 v17, v9, 8, v17
    v_add_u32 v17, s45, v17
    """)
    transp_lds(k, 32, [(17, 64 * (fi >> 1) + 16 * (fi & 1)) for fi in range(8)])
    transp_lds(k, 64, [(17, 64 * (fi >> 1) + 16 * (fi & 1) + 32) for fi in range(8)])
    k("s_waitcnt lgkmcnt(0)")
    for f in range(16): k(f"ds_read_b128 v[{32+4*f}:{35+4*f}], v239 offset:{f*FRP}", tag=("f", f))
    k(f"s_lshl_b32 s54, s53, 4\ns_mul_i32 s55, s52, 3072\ns_add_u32 s55, s55, {WS_W1P}")
    for f in range(16):
        k(f"""
        s_add_u32 s3, s54, {f}                  ; fo
        s_mul_i32 s4, s3, 171
        s_lshr_b32 s4, s4, 9                    ; cw
        s_mul_i32 s5, s4, {57*1024}
        s_lshl_b32 s3, s3, 10
        s_add_u32 s3, s3, s5
        s_add_u32 s3, s3, s55
        """)
        k.wait_lg(("f", f))
        k(f"buffer_store_dwordx4 v[{32+4*f}:{35+4*f}], v238, s[24:27], s3 offen{STF}")
    k(f"{l4}:\ns_nop 1")
    k.stamp(4)
    k(f"""
    s_cmp_lt_u32 s43, 36
    s_cbranch_scc1 {l5}
    v_lshrrev_b32 v130, 2, v8
    v_mul_u32_u24 v130, {2*FRP}, v130
    v_and_b32 v131, 3, v8
    v_lshl_add_u32 v130, v131, 6, v130
    v_lshl_add_u32 v130, v9, 8, v130
    v_add_u32 v130, s45, v130
    s_mul_i32 s3, s47, {4*96*1024}
    s_lshl_b32 s4, s46, 11
    s_add_u32 s3, s3, s4
    s_add_u32 s3, s3, {WS_W2P}
    s_waitcnt lgkmcnt(0)
    """)
    transp_lds(k, R, [(130, 16 * (di & 3) + (FRP if di >= 4 else 0)) for di in range(8)])
    k("s_waitcnt lgkmcnt(0)")
    for f in range(8): k(f"ds_read_b128 v[{136+4*f}:{139+4*f}], v239 offset:{f*FRP}", tag=("g", f))
    for f in range(8):
        k.wait_lg(("g", f))
        k(f"buffer_store_dwordx4 v[{136+4*f}:{139+4*f}], v238, s[24:27], s3 offen offset:{1024*(f&1)}{STF}")
        if f & 1 and f < 7: k(f"s_add_u32 s3, s3, {96*1024}")
    k(f"{l5}:\ns_nop 1\ns_cmp_lt_u32 s43, 64\ns_cbranch_scc1 {l6}")
    k("s_mov_b32 s3, 0x3f803f80")
    for h in range(2):
        A = 176 + 4 * h
        for i in range(10):
            for d in range(4):
                r = 16 + 40 * h + 4 * i + d
                first = i == 0 and d < 2
                k(f"v_dot2_f32_bf16 v{A+2*(d&1)}, v{r}, s3, " + ("0" if first else f"v{A+2*(d&1)}"))
                k(f"v_dot2_f32_bf16 v{A+1+2*(d&1)}, v{r}, v{r}, " + ("0" if first else f"v{A+1+2*(d&1)}"))
    for h in range(2):
        A = 176 + 4 * h
        k(f"v_add_f32 v{A}, v{A}, v{A+2}\nv_add_f32 v{A+1}, v{A+1}, v{A+3}")
    for mod in ("quad_perm:[1,0,3,2]", "quad_perm:[2,3,0,1]", "row_half_mirror"):
        for r in (176, 177, 180, 181): k(f"v_add_f32_dpp v{r}, v{r}, v{r} {mod} row_mask:0xf bank_mask:0xf")
    for h in range(2):
        A = 176 + 4 * h
        ln_scalars(k, A, A + 1, A + 2)
        k(f"v_mul_f32 v{A}, v{A}, v{A+1}")
    k(f"""
    v_lshlrev_b32 v4, 3, v4
    s_mov_b32 s3, {WS_SQ}
    s_mov_b32 exec_lo, 0x01010101
    s_mov_b32 exec_hi, 0x01010101
    buffer_store_dwordx2 v[176:177], v4, s[24:27], s3 offen
    buffer_store_dwordx2 v[180:181], v4, s[24:27], s3 offen offset:64
    s_mov_b64 exec, -1
    {l6}:
    """)
    k.stamp(6)

L2PF = False
def gen_k01(dbg=False, code_end="Lk01_end", code_bytes=20000):
    k = K("k01_kernel", 256, 256, lds=4 * CP, vgpr=256, sgpr=102)
    k.stb = 84 if dbg else None
    prologue(k, "Lk01_end")
    code_prefetch(k, "k01_kernel", code_end, code_bytes, 240)
    phase1(k, "Lk01_end")
    k("s_cmp_ge_u32 s2, 160\ns_cbranch_scc1 Lk01_help")
    conv_role(k, "Lk01_end")
    k("s_branch Lk01_fin")
    k.hist = []; k.vm = []; k.lg = []
    k("Lk01_help:")
    helper_role(k, "Lk01_end")
    k("Lk01_fin:")
    if dbg:
        k(f"s_lshl_b32 s62, s2, 5\ns_add_u32 s62, s62, {WS_DBG}")
        k.stamp_flush(24, 62)
    k("Lk01_end:")
    return k

if __name__ == "__main__":
    import sys
    CLK = len(sys.argv) > 2
    k = gen_k01(len(sys.argv) > 1)
    open("k01.s", "w").write(build([k], [k]))
    print("k01", k.ninstr, k.nnop)
```

```python
from asmlib import *

def cost_of(ln):
    mn = ln.split()[0]
    if mn.startswith(TRANS): return 2
    if mn.startswith(("buffer_", "global_")): return 2
    if mn.startswith("v_dot"): return 2
    if mn.startswith("v_mfma"): return 2
    return 1

class Rec:
    def __init__(self, k): self.k = k; self.items = []
    def __call__(self, s, tag=None):
        for ln in s.strip("\n").split("\n"):
            ln = ln.strip()
            if not ln or ln.startswith(";"): continue
            assert not ln.endswith(":") and "branch" not in ln, ln
            self.items.append((cost_of(ln), (lambda ln=ln, tag=tag: self.k(ln, tag))))
    def wait_vm(self, tag): self.items.append((1, lambda: self.k.wait_vm(tag)))
    def wait_lg(self, tag): self.items.append((1, lambda: self.k.wait_lg(tag)))
    def atomic(self, fn, cost=2): self.items.append((cost, fn))
    def hold(self, n): self.items.append(("hold", n))
    def until(self, key): self.items.append(("until", key))
    def ts(self, name): self.items.append((1, lambda: self.k.ts(name)))
    def newlabel(self, p): return self.k.newlabel(p)

class Glob:
    def __init__(self, k, pace=16):
        self.k = k; self.bg = []; self.done = set(); self.t = 0; self.last = -100; self.pace = pace
    def mark(self, key): self.done.add(key)
    def push(self, tag, fn, cond=None): self.bg.append((tag, cond, fn))
    def first(self):
        for i, (tag, cond, fn) in enumerate(self.bg):
            if cond is None or cond in self.done: return i
        return None
    def ready(self): return self.first() is not None
    def emit(self):
        i = self.first()
        assert i is not None, self.bg[:3]
        tag, cond, fn = self.bg.pop(i)
        n0 = self.k.ninstr; fn(); self.last = self.t
        return self.k.ninstr - n0
    def tick(self, n):
        self.t += n
        if self.t - self.last >= self.pace and self.ready(): return self.emit()
        return 0
    def need(self, tags):
        if not isinstance(tags, list): tags = [tags]
        for tag in tags:
            while tag not in self.k.issued: self.emit()
        idx = [i for i, t in enumerate(self.k.vm) if t in tags]
        if idx: self.k.wait_vm(self.k.vm[idx[-1]])
    def burst(self, n=1000):
        while n > 0 and self.ready(): self.emit(); n -= 1

class Direct:
    def __init__(self, k, G=None): self.k = k; self.G = G
    def __call__(self, s, tag=None):
        for ln in s.strip("\n").split("\n"):
            ln = ln.strip()
            if not ln: continue
            self.k(ln, tag)
            if self.G and not ln.startswith(";"): self.G.tick(cost_of(ln))
    def wait_vm(self, tag): self.k.wait_vm(tag)
    def wait_lg(self, tag): self.k.wait_lg(tag)
    def atomic(self, fn, cost=2): fn()
    def hold(self, n): pass
    def until(self, key): pass
    def ts(self, name): self.k.ts(name)
    def newlabel(self, p): return self.k.newlabel(p)

class Sched:
    def __init__(self, G, sides): self.G = G; self.sides = [s for s in sides if s is not None]
    def gap(self, budget):
        budget -= self.G.tick(4)
        for sd in self.sides:
            while sd.items and budget > 0:
                c, fn = sd.items[0]
                if c == "hold":
                    if fn <= 0: sd.items.pop(0); continue
                    sd.items[0] = ("hold", fn - 1); break
                if c == "until":
                    if fn in self.G.done: sd.items.pop(0); continue
                    break
                if c > budget and budget < 2: break
                sd.items.pop(0); fn(); budget -= c
    def flush(self, only=None):
        for sd in (only if only is not None else self.sides):
            if sd is None: continue
            for c, fn in sd.items:
                if c not in ("hold", "until"):
                    fn(); self.G.tick(c)
            sd.items = []


def zip_longest_(a, b):
    out = []
    for i in range(max(len(a), len(b))):
        out.append(tuple(x[i] for x in (a, b) if i < len(x)))
    return out
```

```python
import struct, os
EXP = os.environ.get("EXP", "").split(",")
from gen_common import *
from sched import *

TP = 20480
HP = 49152
LOG2E = 1.4426950408889634
NL2E = hex(struct.unpack("<I", struct.pack("<f", -LOG2E))[0])
NG1, NG2 = 11, 16
V_L16 = 7
V_LB = (7, 4, 5)
S_TAG = S_NONCE
def lds_addr(off): return V_LB[off >> 16], off & 0xffff
def ENV(n, d): return int(os.environ.get(n, d))

def gen_k2(dbg=False):
    k = K("k2_kernel", 256, 256, lds=160 * 1024, vgpr=256, agpr=256, sgpr=102)
    k.stb = None; k.tl = dbg
    END = "Lk2_end"
    G = Glob(k); D = Direct(k, G); D0 = Direct(k)
    slow = []
    NQ, NY, NS, NX, NT = 64, 76, 88, 92, 104
    V_SR = 9
    V_FL = 10
    k(f"""
    s_cmp_ge_u32 s2, 256
    s_cbranch_scc1 {END}
    s_load_dwordx2 s[8:9], s[0:1], 0
    s_load_dwordx2 s[24:25], s[0:1], 96
    s_load_dwordx2 s[20:21], s[0:1], 88
    s_load_dwordx2 s[16:17], s[0:1], 80
    v_lshrrev_b32 v1, 6, v0
    s_lshl_b32 s3, s2, 3
    v_and_b32 v{NT}, 7, v0                  ; tk
    v_readfirstlane_b32 s{S_WAVE}, v1
    v_add_u32 v{NT+1}, s3, v{NT}            ; token
    v_lshrrev_b32 v{NT+2}, 3, v0            ; Gl
    v_lshlrev_b32 v{NT+4}, 3, v{NT+1}             ; token*8
    v_lshl_add_u32 v{NT+5}, v{NT+2}, 15, v{NT+4}  ; y voffset
    v_mul_u32_u24 v{NT+3}, 1280, v{NT+1}
    v_lshl_add_u32 v{NT+3}, v{NT+2}, 4, v{NT+3}   ; q voffset
    s_mov_b32 s26, {WS_SIZE}
    s_mov_b32 s27, 0x20000
    s_mov_b32 s10, {NB}
    s_mov_b32 s11, 0x20000
    s_mov_b32 s22, 256
    s_mov_b32 s23, 0x20000
    s_mov_b32 s3, {WS_Y4}
    s_mov_b32 s4, {WS_Y4 + 16384}
    s_mov_b32 s5, {WS_Y4 + 64*16384}
    s_mov_b32 s6, {WS_Y4 + 65*16384}
    s_mov_b32 s7, {WS_SQ}
    s_waitcnt lgkmcnt(0)
    """)
    k(f"""
    buffer_load_dwordx2 v[{NY}:{NY+1}], v{NT+5}, s[24:27], s3 offen
    buffer_load_dwordx2 v[{NY+2}:{NY+3}], v{NT+5}, s[24:27], s4 offen
    buffer_load_dwordx4 v[{NQ}:{NQ+3}], v{NT+3}, s[8:11], 0 offen
    buffer_load_dwordx2 v[{NS}:{NS+1}], v{NT+4}, s[24:27], s7 offen
    """, tag=("nq", 0))
    k(f"""
    buffer_load_dwordx2 v[{NY+4}:{NY+5}], v{NT+5}, s[24:27], s5 offen
    buffer_load_dwordx2 v[{NY+6}:{NY+7}], v{NT+5}, s[24:27], s6 offen
    buffer_load_dwordx4 v[{NQ+4}:{NQ+7}], v{NT+3}, s[8:11], 0 offen offset:512
    """, tag=("nq", 1))
    k(f"""
    s_cmp_lt_u32 s{S_WAVE}, 2
    s_cselect_b32 s28, 0, 0x70000000
    s_add_u32 s29, s28, {WS_Y4 + 128*16384}
    s_add_u32 s30, s28, {WS_Y4 + 129*16384}
    """)
    k(f"""
    buffer_load_dwordx2 v[{NY+8}:{NY+9}], v{NT+5}, s[24:27], s29 offen
    buffer_load_dwordx2 v[{NY+10}:{NY+11}], v{NT+5}, s[24:27], s30 offen
    buffer_load_dwordx4 v[{NQ+8}:{NQ+11}], v{NT+3}, s[8:11], s28 offen offset:1024
    """, tag=("nq", 2))
    sv = list(k.vm); nonce_publish(k, NT + 10); k.vm = sv
    k.ts("start")
    k(f"""
    v_and_b32 v2, 63, v0                    ; lane
    s_mov_b32 s{S_SPIN}, {SPIN}
    v_lshlrev_b32 v{V_L16}, 4, v2
    s_and_b32 s3, s2, 7                     ; x
    s_lshr_b32 s4, s2, 3                    ; r
    s_lshr_b32 s41, s4, 1                   ; u  (G1 group)
    s_lshl_b32 s42, s3, 1
    s_and_b32 s5, s4, 1
    s_add_u32 s42, s42, s5                  ; ct
    s_lshl_b32 s46, s42, 2
    s_add_u32 s46, s46, s{S_WAVE}
    s_mul_i32 s46, s46, {60*1024}
    s_add_u32 s46, s46, {WS_W1P}
    s_sub_u32 s5, s4, 22                    ; r-22
    s_cmp_ge_u32 s5, 5
    s_cselect_b32 s6, 1, 0
    s_lshl_b32 s43, s3, 1
    s_add_u32 s43, s43, s6                  ; v  (G2 group)
    s_mul_i32 s6, s6, 5
    s_sub_u32 s44, s5, s6                   ; c2
    s_lshl_b32 s47, s44, 2
    s_add_u32 s47, s47, s{S_WAVE}           ; cw2
    s_mul_i32 s6, s47, {96*1024}
    s_add_u32 s6, s6, {WS_W2P}
    s_cmp_ge_u32 s4, 22
    s_cselect_b32 s46, s6, s46
    s_cselect_b32 s45, 1, 0                 ; role
    """)
    k.last_w = None
    def wreg(f): return f"a[{4*f}:{4*f+3}]" if f < 64 else f"v[{128+4*(f-64)}:{131+4*(f-64)}]"
    def w_frag(f):
        if k.last_w != f >> 2: k(f"s_add_u32 s62, s46, {1024*(f & ~3)}")
        k.last_w = f >> 2
        k(f"buffer_load_dwordx4 {wreg(f)}, v{V_L16}, s[24:27], s62 offen offset:{1024*(f%4)}", tag=("w", f))
    def push_w(f): G.push(("w", f), lambda: w_frag(f))
    for f in range(60): push_w(f)
    G.burst(ENV("NB0", 6))
    D0(f"""
    s_mov_b32 s55, 0x3f803f80
    v_lshrrev_b32 v{NT+9}, 4, v{NT+1}       ; tile
    v_mul_u32_u24 v{NT+6}, {TP}, v{NT+9}
    v_and_b32 v{NT+7}, 15, v{NT+1}
    v_lshl_add_u32 v{NT+6}, v{NT+7}, 4, v{NT+6}
    v_lshl_add_u32 v{NT+6}, v{NT+2}, 8, v{NT+6}
    v_lshlrev_b32 v{NT+8}, 11, v{NT+9}
    v_lshl_add_u32 v{NT+8}, v{NT+7}, 4, v{NT+8}
    s_lshl_b32 s5, s{S_WAVE}, 8
    v_mov_b32 v{NT+7}, s5
    v_cmp_gt_u32 s[66:67], 8, v2
    v_cndmask_b32 v{NT+7}, 64, v{NT+7}, s[66:67]
    v_cndmask_b32 v{NT+9}, 4, 0, s[66:67]
    v_lshlrev_b32 v{NT+7}, v{NT+9}, v{NT+7}
    v_add_u32 v{NT+8}, v{NT+8}, v{NT+7}
    v_add_u32 v{V_LB[1]}, 0x10000, v{V_L16}
    v_add_u32 v{V_LB[2]}, 0x20000, v{V_L16}
    v_lshlrev_b32 v{V_FL}, 8, v2
    v_and_b32 v{V_SR}, 0xff, v{V_L16}             ; n*16
    v_bfe_u32 v3, v2, 4, 1
    v_lshl_add_u32 v{V_SR}, v3, 9, v{V_SR}
    v_lshrrev_b32 v3, 5, v2
    v_lshl_add_u32 v{V_SR}, v3, 11, v{V_SR}
    """)
    k(f"buffer_load_dwordx2 v[{NT+22}:{NT+23}], off, s[{S_DBG}:{S_DBG+3}], 0 sc1", tag="nonce")

    def x1_math(e, q, y, S, x, t, pk=True, keep=None):
        unpack_lo(e, t, q); unpack_hi(e, t + 1, q); unpack_lo(e, t + 2, y); unpack_hi(e, t + 3, y)
        if pk:
            e(f"v_pk_fma_f32 v[{t+4}:{t+5}], v[{t}:{t+1}], v[{S}:{S+1}], v[{S}:{S+1}] op_sel:[0,1,0] op_sel_hi:[1,1,0] neg_lo:[0,0,1] neg_hi:[0,0,1]")
            e(f"v_pk_fma_f32 v[{t+4}:{t+5}], v[{t+4}:{t+5}], v[{t+2}:{t+3}], v[{t}:{t+1}]")
        else:
            for i in range(2): e(f"v_fma_f32 v{t+4+i}, v{t+i}, v{S+1}, -v{S}")
            for i in range(2): e(f"v_fma_f32 v{t+4+i}, v{t+4+i}, v{t+2+i}, v{t+i}")
        e(f"v_cvt_pk_bf16_f32 v{x}, v{t+4}, v{t+5}")
    def swap_red(e, op, regs, t):
        for i, r in enumerate(regs): e(f"v_mov_b32 v{t+i}, v{r}")
        for i, r in enumerate(regs): e(f"{op} v{r}, v{t+i}")
        for i, r in enumerate(regs): e(f"v_add_f32 v{r}, v{r}, v{t+i}")

    t = NT + 10
    S1, S2 = NT + 20, NT + 21
    k.ts("n_in")
    G.pace = ENV("PACEN", 30)
    for rho in range(3):
        k.wait_vm(("nq", rho))
        for d in range(4):
            x = NX + 4 * rho + d
            x1_math(D, NQ + 4 * rho + d, NY + 4 * rho + d, NS, x, t)
        D0(f"s_add_u32 s3, {'s28' if rho == 2 else '0'}, {WS_X + 8192*rho}")
        D0(f"buffer_store_dwordx4 v[{NX+4*rho}:{NX+4*rho+3}], v{NT+6}, s[24:27], s3 offen sc1", tag="xst")
    k.ts("n_out")
    for i in range(12):
        o = t + 2 * (i & 1)
        D0(f"v_dot2_f32_bf16 v{o}, v{NX+i}, s55, " + ("0" if i < 2 else f"v{o}"))
        D0(f"v_dot2_f32_bf16 v{o+1}, v{NX+i}, v{NX+i}, " + ("0" if i < 2 else f"v{o+1}"))
    D0(f"v_pk_add_f32 v[{S1}:{S2}], v[{t}:{t+1}], v[{t+2}:{t+3}]")
    for r in (S1, S2): D0(f"v_add_f32_dpp v{r}, v{r}, v{r} row_ror:8 row_mask:0xf bank_mask:0xf")
    swap_red(D0, "v_permlane16_swap_b32", [S1, S2], t); swap_red(D0, "v_permlane32_swap_b32", [S1, S2], t)
    lg = k.newlabel("Lng")
    k.wait_vm("nonce")
    k(f"v_readfirstlane_b32 s{S_NONCE}, v{NT+22}\nv_readfirstlane_b32 s{S_NONCE+1}, v{NT+23}")
    k(f"s_cmp_lg_u32 s{S_NONCE}, 0\ns_cbranch_scc1 {lg}")
    sv = list(k.vm); nonce_get(k, NT + 22, END); k.vm = sv
    k(f"""
    {lg}:
    v_cndmask_b32 v{S1}, 0, v{S1}, s[66:67]
    v_cndmask_b32 v{S2}, 0, v{S2}, s[66:67]
    s_mov_b32 s3, {WS_S2}
    s_mov_b64 exec, 0xffff
    buffer_store_dwordx4 v[{S1}:{S1+3}], v{NT+8}, s[24:27], s3 offen sc1
    s_mov_b64 exec, -1
    """)
    k.wait_vm("xst")
    lf = k.newlabel("Lnf")
    k(f"""
    s_barrier
    s_cmp_lg_u32 s{S_WAVE}, 0
    s_cbranch_scc1 {lf}
    s_lshr_b32 s3, s2, 2
    s_lshl_b32 s3, s3, 11
    s_add_u32 s3, s3, {WS_FX}
    s_and_b32 s4, s2, 3
    s_lshl_b32 s4, s4, 8
    v_mov_b32 v{t}, 1024
    v_writelane_b32 v{t}, s4, 0
    s_mov_b64 exec, 3
    """)
    sv = list(k.vm)
    k(f"buffer_store_dwordx2 v[{NT+22}:{NT+23}], v{t}, s[24:27], s3 offen sc1")
    k.vm = sv
    k(f"s_mov_b64 exec, -1\n{lf}:")
    k.ts("n_sig")
    k(f"s_cmp_lg_u32 s45, 0\ns_cbranch_scc1 Lk2_g2")
    common_state = (list(k.vm), list(k.lg), set(k.issued), list(G.bg), k.last_w, list(getattr(k, "tsn", [])))

    def flag_poll(e, vt, vaddr, mkaddr, sreg, nl, tag, hold, name, skip=None):
        mask = hex((1 << nl) - 1)
        def ld(tg=None): k(f"buffer_load_dwordx2 v[{vt}:{vt+1}], v{vaddr}, s[24:27], s{sreg} offen sc1", tag=tg)
        def issue():
            k(mkaddr); k(f"s_mov_b64 exec, {mask}"); ld(tag); k("s_mov_b64 exec, -1")
        def check():
            l, l2, l3 = k.newlabel("Lfp"), k.newlabel("Lfo"), k.newlabel("Lfs")
            k.ts(name + "_in")
            k.wait_vm(tag)
            sv = list(k.vm)
            if skip: k(skip + f"\ns_cbranch_scc1 {l3}")
            k(f"s_mov_b64 exec, {mask}\ns_branch {l2}\n{l}:\ns_sleep 1")
            ld()
            k(f"""
            s_waitcnt vmcnt(0)
            s_sub_u32 s{S_SPIN}, s{S_SPIN}, 1
            s_cbranch_scc1 {END}
            {l2}:
            v_cmp_ne_u64 vcc, s[{S_NONCE}:{S_NONCE+1}], v[{vt}:{vt+1}]
            s_cbranch_vccnz {l}
            s_mov_b64 exec, -1
            {l3}:
            """)
            k.vm = sv
            k.ts(name + "_ok")
        e.atomic(issue); e.hold(hold); e.atomic(check)

    def stats_get(e, r, sreg, mkaddr, tag, hold, name=None, e0=None):
        def lds(tg=None):
            k(f"buffer_load_dwordx4 v[{r}:{r+3}], v{V_SR}, s[24:27], s{sreg} offen sc1", tag=tg)
            k(f"buffer_load_dwordx4 v[{r+4}:{r+7}], v{V_SR}, s[24:27], s{sreg} offen offset:256 sc1", tag=tg)
            k(f"buffer_load_dwordx4 v[{r+8}:{r+11}], v{V_S4}, s[24:27], s{sreg} offen offset:1024 sc1", tag=tg)
        def check():
            l, l2 = k.newlabel("Lsp"), k.newlabel("Lso")
            if name: k.ts(name + "_in")
            k.wait_vm(tag)
            sv = list(k.vm)
            k(f"s_branch {l2}\n{l}:\ns_sleep 1")
            lds()
            k(f"""
            s_waitcnt vmcnt(0)
            s_sub_u32 s{S_SPIN}, s{S_SPIN}, 1
            s_cbranch_scc1 {END}
            {l2}:
            v_cmp_ne_u64 s[68:69], s[{S_NONCE}:{S_NONCE+1}], v[{r+2}:{r+3}]
            v_cmp_ne_u64 s[70:71], s[{S_NONCE}:{S_NONCE+1}], v[{r+6}:{r+7}]
            v_cmp_ne_u64 vcc, s[{S_NONCE}:{S_NONCE+1}], v[{r+10}:{r+11}]
            s_or_b64 s[68:69], s[68:69], s[70:71]
            s_or_b64 vcc, vcc, s[68:69]
            s_cbranch_vccnz {l}
            """)
            k.vm = sv
            if name: k.ts(name + "_ok")
        (e0 or e).atomic(lambda: (k(mkaddr), lds(tag)))
        e.hold(hold)
        e.atomic(check)
        e(f"v_add_f32 v{r}, v{r}, v{r+4}\nv_add_f32 v{r+1}, v{r+1}, v{r+5}")
        swap_red(e, "v_permlane16_swap_b32", [r, r + 1], r + 2)
        e(f"v_add_f32 v{r}, v{r}, v{r+8}\nv_add_f32 v{r+1}, v{r+1}, v{r+9}")
        ln_scalars(e, r, r + 1, r + 2)
    V_S4 = 11

    V_CS = 16; ACC = (28, 52); TB = 76; ST = (92, 98); SL = 104; TMP = 116; FT = 140
    A_ONES = 240
    D(f"""
    v_and_b32 v{V_S4}, 0xfffffdff, v{V_SR}
    v_mov_b32 v{TMP}, s55
    v_accvgpr_write_b32 a{A_ONES}, v{TMP}
    v_accvgpr_write_b32 a{A_ONES+1}, v{TMP}
    v_accvgpr_write_b32 a{A_ONES+2}, v{TMP}
    v_accvgpr_write_b32 a{A_ONES+3}, v{TMP}
    s_and_b32 s3, s{S_WAVE}, 1
    s_mul_i32 s3, s3, {TP}
    s_lshr_b32 s4, s{S_WAVE}, 1
    s_lshl_b32 s4, s4, 11
    s_add_u32 s49, s3, s4
    s_mul_i32 s48, s41, {2*TP}
    s_add_u32 s48, s48, s49
    s_mul_i32 s36, s41, {2*HP}
    s_mul_i32 s5, s42, 3072
    s_add_u32 s36, s36, s5
    s_mul_i32 s5, s{S_WAVE}, 768
    s_add_u32 s36, s36, s5
    s_lshl_b32 s37, s41, 14
    s_lshl_b32 s5, s42, 10
    s_add_u32 s37, s37, s5
    s_lshl_b32 s5, s{S_WAVE}, 8
    s_add_u32 s37, s37, s5
    s_lshl_b32 s38, s41, 11                 ; FX: n*2048
    s_lshl_b32 s39, s41, 12                 ; S2: n*4096
    s_mov_b32 s64, -1
    s_mov_b32 s65, 0xffff
    v_mov_b32 v12, s{S_NONCE}
    v_mov_b32 v13, s{S_NONCE+1}
    """)
    NI = 12
    def tok_dma(i, j):
        if j % 2 == 0:
            k(f"s_add_u32 m0, s49, {(i % 4)*2*TP + (j>>1)*4096}\ns_add_u32 s63, s48, {WS_X + i*NG1*2*TP + (j>>1)*4096}")
        k(f"buffer_load_dwordx4 v{V_L16}, s[24:27], s63 offen offset:{1024*(j&1)} sc1 lds", tag=("tok", i, j))
    def push_toks(i, front=True):
        rest = G.bg; G.bg = []
        for j in range(10): G.push(("tok", i, j), lambda i=i, j=j: tok_dma(i, j))
        G.bg += rest
    def fx_poll(e, i, hold):
        flag_poll(e, FT, V_FL, f"s_add_u32 s33, s38, {WS_FX + i*NG1*2048}", 33, 5, ("fx", i), hold, f"fx{i}",
                  skip=(f"s_cmp_ge_u32 s41, {128 - 11*NG1}" if i == NI - 1 else None))
    def g1_stats(e, i, hold, e0=None):
        stats_get(e, SL, 32, f"s_add_u32 s32, s39, {WS_S2 + i*NG1*4096}", ("s2", i), hold, e0=e0)
        d = ST[i & 1]
        e(f"v_sub_f32 v{d}, 0, v{SL}\nv_mul_f32 v{d+1}, {NL2E}, v{SL+1}\nv_mul_f32 v{d+2}, v{SL+1}, v{SL+1}\nv_rcp_f32 v{d+2}, v{d+2}")
        e(f"v_mov_b32 v{d+3}, v{d}\nv_mov_b32 v{d+4}, v{d+1}\nv_mov_b32 v{d+5}, v{d+2}")
        for x in range(3): e(f"v_permlane32_swap_b32 v{d+x}, v{d+3+x}")
    def g1_epi(e, i):
        acc = ACC[i & 1]
        P, Q, R = TMP + 16, TMP + 17, TMP + 18
        for tt in range(2):
            nm = ST[i & 1] + 3 * tt; c1 = nm + 1; r2 = nm + 2
            A = [acc + 12 * tt + 4 * mt for mt in range(3)]
            T = [TMP + 2 * mt for mt in range(3)]
            o = TMP + 8 + 4 * tt
            for mt, a in enumerate(A):
                for x in range(4): e(f"v_fma_f32 v{a+x}, v{nm}, v{V_CS+4*mt+x}, v{a+x}")
            for a, t in zip(A, T):
                for x in range(2): e(f"v_mul_f32 v{t+x}, v{a+x}, v{c1}")
            for t in T:
                for x in range(2): e(f"v_exp_f32 v{t+x}, v{t+x}")
            for a in A:
                for x in range(2): e(f"v_mul_f32 v{a+x}, v{a+x}, v{a+2+x}")
            for a, t in zip(A, T):
                for x in range(2): e(f"v_fma_f32 v{t+x}, v{t+x}, v{r2}, v{r2}")
            for t in T:
                for x in range(2): e(f"v_rcp_f32 v{t+x}, v{t+x}")
            for a, t in zip(A, T):
                for x in range(2): e(f"v_mul_f32 v{a+x}, v{a+x}, v{t+x}")
            e(f"v_cvt_pk_bf16_f32 v{P}, v{A[0]}, v{A[0]+1}\nv_cvt_pk_bf16_f32 v{Q}, v{A[1]}, v{A[1]+1}")
            e(f"v_cvt_pk_bf16_f32 v{R}, v{A[2]}, v{A[2]+1}\nv_cvt_pk_bf16_f32 v{o+3}, v{A[2]}, v{A[2]+1}")
            e(f"v_cvt_pk_bf16_f32 v{o}, v{A[0]}, v{A[0]+1}")
            e(f"v_permlane16_swap_b32 v{P}, v{Q}")
            e(f"v_cvt_pk_bf16_f32 v{o+1}, v{A[1]}, v{A[1]+1}")
            e(f"v_permlane16_swap_b32 v{R}, v{o+3}")
            e(f"v_cvt_pk_bf16_f32 v{o+2}, v{A[2]}, v{A[2]+1}")
            e(f"s_add_u32 s6, s36, {WS_H + i*NG1*2*HP + tt*HP}")
            e(f"v_permlane32_swap_b32 v{Q}, v{o+3}")
            e.atomic(lambda o=o: k(f"s_mov_b64 exec, s[64:65]\nbuffer_store_dwordx4 v[{o}:{o+3}], v{V_L16}, s[24:27], s6 offen sc1\ns_mov_b64 exec, -1", tag=("hst", i)))
    def g1_flag(e, i):
        def f():
            k.wait_vm(("hst", i))
            k(f"s_add_u32 s6, s37, {WS_FH + i*NG1*16384}\ns_mov_b64 exec, 1\nbuffer_store_dwordx2 v[12:13], off, s[24:27], s6 sc1\ns_mov_b64 exec, -1")
            k.ts(f"fh{i}")
        e.atomic(f)
    def colsum(ks):
        G.need([("w", 3 * ks + x) for x in range(3)])
        for mt in range(3):
            a = V_CS + 4 * mt
            k(f"v_mfma_f32_16x16x32_bf16 v[{a}:{a+3}], a[{12*ks+4*mt}:{12*ks+4*mt+3}], a[{A_ONES}:{A_ONES+3}], " + ("0" if ks == 0 else f"v[{a}:{a+3}]"))
            G.tick(4)
    def g1_reads(i, ks):
        p = (20 * i + ks) & 1
        out = []
        for tt in range(2):
            v, off = lds_addr((i % 4) * 2 * TP + tt * TP + ks * 1024)
            r = TB + 8 * p + 4 * tt
            out.append(f"ds_read_b128 v[{r}:{r+3}], v{v} offset:{off}")
        return out
    G.burst(8)
    fx_poll(D0, 0, 0)
    push_toks(0); G.burst(10)
    G.pace = ENV("PACE1", 12)
    NCS = 5
    for ks in range(NCS): colsum(ks)
    def g1_sync(i, c):
        G.need([("tok", i, j) for j in (range(4) if c == 0 else range(4, 10))])
        k("s_barrier")
    g1_sync(0, 0)
    for rd in g1_reads(0, 0): k(rd, tag=("fr", 0, 0))
    for i in range(NI):
        k.ts(f"it{i}")
        E = Rec(k); Pn = Rec(k); P0 = Rec(k)
        g1_stats(Pn, i, 0, e0=P0)
        pst = Pn.items; Pn.items = []
        if i > 0:
            g1_epi(E, i - 1); E.hold(ENV("ACKH", 14)); g1_flag(E, i - 1)
        E.atomic(lambda i=i: G.mark(("pub", i)), 0)
        if i + 1 < NI:
            Pn.until(("ks", i, ENV("FXK", 6)))
            fx_poll(Pn, i + 1, 0)
            chk = Pn.items.pop(); Pn.until(("pub", i)); Pn.until(("ks", i, ENV("FXC", 10))); Pn.items.append(chk)
            Pn.atomic(lambda i=i: (push_toks(i + 1), G.burst(4)), 0)
        else: Pn.until(("ks", i, 6))
        Pn.items += pst
        sc = Sched(G, [P0, E, Pn])
        acc = ACC[i & 1]
        for ks in range(20):
            p = (20 * i + ks) & 1
            nxt = []
            if ks == 7: g1_sync(i, 1)
            if ks < 19: nxt = g1_reads(i, ks + 1); ntag = ("fr", i, ks + 1)
            elif i + 1 < NI:
                sc.flush([E, Pn]); g1_sync(i + 1, 0); nxt = g1_reads(i + 1, 0); ntag = ("fr", i + 1, 0)
            if i == 0: G.need([("w", 3 * ks + x) for x in range(3)])
            k.wait_lg(("fr", i, ks))
            n = 0
            for tt in range(2):
                for mt in range(3):
                    a = acc + 12 * tt + 4 * mt; b = TB + 8 * p + 4 * tt
                    k(f"v_mfma_f32_16x16x32_bf16 v[{a}:{a+3}], a[{12*ks+4*mt}:{12*ks+4*mt+3}], v[{b}:{b+3}], " + ("0" if ks == 0 else f"v[{a}:{a+3}]"))
                    bud = ENV("BUD1", 3)
                    if n == 0 and nxt:
                        for rd in nxt: k(rd, tag=ntag)
                        bud -= 2
                    if n == 5: bud -= 1; G.mark(("ks", i, ks))
                    sc.gap(bud); n += 1
            if i == 0 and ks >= NCS: colsum(ks)
        sc.flush()
        if i == NI - 2:
            lt = k.newlabel("Lg1t")
            k(f"s_cmp_ge_u32 s41, {128 - 11*NG1}\ns_cbranch_scc1 {lt}")
            st = (list(k.vm), list(k.lg), list(k.hist), list(getattr(k, "tsn", [])))
            def tail(lt=lt, st=st, i=i):
                k.vm, k.lg, k.hist = list(st[0]), list(st[1]), list(st[2])
                tl = k.tl; k.tl = False
                k(f"{lt}:")
                g1_epi(D0, i); g1_flag(D0, i)
                k.tl = tl
                k("s_branch Lk2_g1end")
            slow.append(tail)
    g1_epi(D0, NI - 1); g1_flag(D0, NI - 1)
    k("Lk2_g1end:")
    assert not G.bg, G.bg
    names = []
    if dbg:
        k.ts_flush(24, WS_DBG + 65536); names.append(" ".join(k.tsn))
    k("s_endpgm")

    k.vm, k.lg, k.issued, G.bg, k.last_w = list(common_state[0]), list(common_state[1]), set(common_state[2]), list(common_state[3]), common_state[4]
    k.tsn = list(common_state[5]); k.hist = []; G.done = set()
    k("Lk2_g2:")
    for f in range(60, 96): push_w(f)
    V_XA, V_YA, V_OA, V_FA, V_SW, V_LW, V_LR = 12, 13, 14, 15, 6, 8, 3
    AC2 = (16, 32); HB = 48; XR = 80; YR = 88; TM = 96; F2 = 126
    SCR = 6 * 24576
    G.pace = 8
    D(f"""
    v_and_b32 v{V_S4}, 0xfffffdff, v{V_SR}
    s_mov_b32 s18, {NB}
    s_mov_b32 s19, 0x20000
    v_lshrrev_b32 v{TM}, 4, v2              ; q
    v_and_b32 v{TM+1}, 15, v2               ; n
    s_lshl_b32 s3, s47, 2
    v_add_u32 v{TM+2}, s3, v{TM}
    v_lshlrev_b32 v{V_XA}, 8, v{TM+2}
    v_lshl_add_u32 v{V_XA}, v{TM+1}, 4, v{V_XA}
    v_lshlrev_b32 v{V_YA}, 15, v{TM+2}
    v_lshl_add_u32 v{V_YA}, v{TM+1}, 3, v{V_YA}
    v_mul_u32_u24 v{V_OA}, 1280, v{TM+1}
    v_lshl_add_u32 v{V_OA}, v{TM+2}, 4, v{V_OA}
    v_lshrrev_b32 v{V_FA}, 2, v{TM+1}
    v_lshlrev_b32 v{V_FA}, 12, v{V_FA}
    v_and_b32 v{TM+3}, 3, v{TM+1}
    v_lshl_add_u32 v{V_FA}, v{TM+3}, 8, v{V_FA}
    s_lshl_b32 s3, s44, 8
    v_add_u32 v{V_SW}, s3, v{V_S4}
    v_lshrrev_b32 v{TM+3}, 5, v2
    v_lshlrev_b32 v{V_LR}, 7, v{TM+3}
    v_lshl_add_u32 v{V_LR}, v{TM+1}, 3, v{V_LR}
    v_add_u32 v{V_LR}, {SCR}, v{V_LR}
    s_lshl_b32 s3, s{S_WAVE}, 8
    v_add_u32 v{V_LW}, s3, v{V_LR}
    s_mul_i32 s48, s43, {2*HP}
    s_mul_i32 s3, s{S_WAVE}, 3072
    s_add_u32 s48, s48, s3
    s_mul_i32 s49, s{S_WAVE}, 6144
    s_lshl_b32 s37, s43, 14
    s_lshl_b32 s3, s{S_WAVE}, 10
    s_add_u32 s37, s37, s3
    s_mul_i32 s36, s43, {2*TP}
    s_lshl_b32 s38, s43, 11
    s_lshl_b32 s3, s44, 8
    s_add_u32 s38, s38, s3
    s_lshl_b32 s39, s43, 12                 ; S base
    s_lshl_b32 s35, s43, 8
    s_mul_i32 s34, s43, {32*1280}
    s_mov_b32 s64, 0xffff
    s_mov_b32 s65, 0xffff
    """)
    NJ = 8
    def h_dma(gc, j):
        i, c = gc >> 2, gc & 3
        tl, g = j // 3, j % 3
        if g == 0:
            k(f"s_add_u32 m0, s49, {(gc % 6)*24576 + tl*3072}\ns_add_u32 s63, s48, {WS_H + i*NG2*2*HP + tl*HP + c*12288}")
        k(f"buffer_load_dwordx4 v{V_L16}, s[24:27], s63 offen offset:{1024*g} sc1 lds", tag=("hd", gc, j))
    def push_h(i):
        rest = G.bg; G.bg = []
        for c in range(4):
            gc = 4 * i + c
            for tl in range(2):
                G.push(("hd", gc, 3 * tl + 2), (lambda gc=gc, tl=tl: [h_dma(gc, 3 * tl + g) for g in range(3)]), ("bar", gc - 4) if gc >= 6 else None)
        G.bg += rest
    def fh_poll(e, i, hold):
        flag_poll(e, F2, V_FA, f"s_add_u32 s33, s37, {WS_FH + i*NG2*16384}", 33, 16, ("fh", i), hold, f"fh{i}")
    def xy_loads(i):
        k(f"s_add_u32 s3, s36, {WS_X + i*NG2*2*TP}\ns_add_u32 s4, s3, {TP}")
        for tl in range(2): k(f"buffer_load_dwordx4 v[{XR+4*tl}:{XR+4*tl+3}], v{V_XA}, s[24:27], s{3+tl} offen sc1", tag=("xy", i))
        if i < 4:
            k(f"s_add_u32 s3, s35, {WS_Y4 + i*NG2*256}\ns_add_u32 s4, s3, 16384")
            for tl in range(2):
                for e_ in range(2): k(f"buffer_load_dwordx2 v[{YR+4*tl+2*e_}:{YR+4*tl+2*e_+1}], v{V_YA}, s[24:27], s{3+e_} offen offset:{128*tl}", tag=("xy", i))
    def two_tile_red(e, a, b, t):
        for x in range(2): e(f"v_permlane32_swap_b32 v{a+x}, v{b+x}")
        for x in range(2): e(f"v_add_f32 v{a+x}, v{a+x}, v{b+x}")
        swap_red(e, "v_permlane16_swap_b32", [a, a + 1], t)
    def wg_publish(e, a, so, base, before=None, after=None):
        e(f"ds_write_b64 v{V_LW}, v[{a}:{a+1}] offset:{so}", tag=("sw", base))
        e.hold(3)
        def f():
            k.wait_lg(("sw", base))
            if before: before()
            l = k.newlabel("Lwp")
            k(f"s_barrier\ns_cmp_lg_u32 s{S_WAVE}, 0\ns_cbranch_scc1 {l}")
            sv = (list(k.vm), list(k.lg))
            if after: after()
            t = TM + 16
            for w in range(4): k(f"ds_read_b64 v[{t+2*w}:{t+2*w+1}], v{V_LR} offset:{so + 256*w}")
            k(f"""
            s_add_u32 s7, s39, {base}
            s_waitcnt lgkmcnt(0)
            v_add_f32 v{t}, v{t}, v{t+2}
            v_add_f32 v{t+1}, v{t+1}, v{t+3}
            v_add_f32 v{t+4}, v{t+4}, v{t+6}
            v_add_f32 v{t+5}, v{t+5}, v{t+7}
            v_add_f32 v{t}, v{t}, v{t+4}
            v_add_f32 v{t+1}, v{t+1}, v{t+5}
            v_mov_b32 v{t+2}, s{S_NONCE}
            v_mov_b32 v{t+3}, s{S_NONCE+1}
            s_mov_b64 exec, s[64:65]
            buffer_store_dwordx4 v[{t}:{t+3}], v{V_SW}, s[24:27], s7 offen sc1
            s_mov_b64 exec, -1
            s_nop 1
            {l}:
            """)
            k.vm, k.lg = sv
        e.atomic(f)
    def part1(i):
        e = D; acc = AC2[i & 1]
        k.wait_vm(("xy", i))
        for d in range(8):
            unpack_lo(e, TM + 2 * d, XR + d); unpack_hi(e, TM + 2 * d + 1, XR + d)
        for d in range(8): e(f"v_cvt_pk_bf16_f32 v{TM+16+d}, v{acc+2*d}, v{acc+2*d+1}")
        for d in range(8):
            unpack_lo(e, acc + 2 * d, TM + 16 + d); unpack_hi(e, acc + 2 * d + 1, TM + 16 + d)
        for d in range(8): e(f"v_pk_add_f32 v[{acc+2*d}:{acc+2*d+1}], v[{acc+2*d}:{acc+2*d+1}], v[{TM+2*d}:{TM+2*d+1}]")
        for d in range(8): e(f"v_cvt_pk_bf16_f32 v{XR+d}, v{acc+2*d}, v{acc+2*d+1}")
        if i >= 4:
            k(f"s_add_u32 s3, s34, {(i-4)*NG2*32*1280}\ns_add_u32 s4, s3, {16*1280}")
            for tl in range(2): k(f"buffer_store_dwordx4 v[{XR+4*tl}:{XR+4*tl+3}], v{V_OA}, s[16:19], s{3+tl} offen", tag=("ost", i))
            return
        for d in range(4):
            for tl in range(2):
                x = XR + 4 * tl + d; a = TM + 2 * tl
                e(f"v_dot2_f32_bf16 v{a}, v{x}, s55, " + ("0" if d == 0 else f"v{a}"))
                e(f"v_dot2_f32_bf16 v{a+1}, v{x}, v{x}, " + ("0" if d == 0 else f"v{a+1}"))
        two_tile_red(e, TM, TM + 2, TM + 4)
        wg_publish(e, TM, 0, WS_S1 + i * NG2 * 4096)
        k.ts(f"p1_{i}")
    def part2(e, i, hold):
        r = TM
        stats_get(e, r, 32, f"s_add_u32 s32, s39, {WS_S1 + i*NG2*4096}", ("s1", i), hold, f"s1_{i}")
        e(f"v_mul_f32 v{r}, v{r}, v{r+1}\nv_mov_b32 v{r+3}, v{r+1}\nv_mov_b32 v{r+2}, v{r}")
        for x in range(2): e(f"v_permlane32_swap_b32 v{r+x}, v{r+2+x}")
        SA = r + 4
        e(f"s_add_u32 s30, s36, {WS_X + (64 + i*NG2)*2*TP}\ns_add_u32 s31, s30, {TP}")
        for tl in range(2):
            for d in range(4):
                x = XR + 4 * tl + d; t = r + 8
                x1_math(e, x, YR + 4 * tl + d, r + 2 * tl, x, t, pk=False)
                a = SA + 2 * tl
                if d == 0: e(f"v_add_f32 v{a}, v{t+4}, v{t+5}\nv_mul_f32 v{a+1}, v{t+4}, v{t+4}")
                else: e(f"v_add_f32 v{a}, v{a}, v{t+4}\nv_fmac_f32 v{a+1}, v{t+4}, v{t+4}\nv_add_f32 v{a}, v{a}, v{t+5}")
                e(f"v_fmac_f32 v{a+1}, v{t+5}, v{t+5}")
            e(f"buffer_store_dwordx4 v[{XR+4*tl}:{XR+4*tl+3}], v{V_XA}, s[24:27], s{30+tl} offen sc1", tag=("x3", i))
        two_tile_red(e, SA, SA + 2, r + 8)
        e.hold(12)
        def flag():
            k(f"""
            s_add_u32 s7, s38, {WS_FX + (64 + i*NG2)*2048}
            v_mov_b32 v{TM+24}, s{S_NONCE}
            v_mov_b32 v{TM+25}, s{S_NONCE+1}
            s_mov_b64 exec, 1
            buffer_store_dwordx2 v[{TM+24}:{TM+25}], off, s[24:27], s7 sc1
            s_mov_b64 exec, -1
            """)
        wg_publish(e, SA, 1024, WS_S2 + (64 + i * NG2) * 4096, before=lambda: k.wait_vm(("x3", i)), after=flag)
        e.ts(f"fx_{i}")
    def g2_reads(u):
        i, ks = divmod(u, 48)
        gc = 4 * i + ks // 12; pw, g = (ks % 12) // 3, ks % 3
        out = []
        for tl in range(2):
            v, off = lds_addr((gc % 6) * 24576 + pw * 6144 + tl * 3072 + g * 1024)
            r = HB + 8 * (u % 4) + 4 * tl
            out.append(f"ds_read_b128 v[{r}:{r+3}], v{v} offset:{off}")
        return out
    def g2_sync(gc):
        G.need([("hd", gc, 2), ("hd", gc, 5)])
        k("s_barrier"); G.mark(("bar", gc))
    G.burst()
    LA = 2
    def start_item(i):
        g2_sync(4 * i)
        for u in range(48 * i, 48 * i + LA):
            for rd in g2_reads(u): k(rd, tag=("fr", u))
    fh_poll(D0, 0, 0); push_h(0); G.burst(4); xy_loads(0)
    G.pace = ENV("PACE2", 40)
    for i in range(NJ):
        start_item(i)
        k.ts(f"it{i}")
        E = Rec(k); Pn = Rec(k)
        if 0 < i <= 3:
            E.hold(ENV("S1H", 10)); part2(E, i - 1, 30)
        if i > 0: E.atomic(lambda i=i: (k.wait_vm(("ost", i - 1)) if i > 4 else None, xy_loads(i)))
        E.atomic(lambda i=i: G.mark(("pub", i)), 0)
        if i + 1 < NJ and i != 3:
            Pn.until(("ks", i, ENV("FHK", 22)))
            fh_poll(Pn, i + 1, 0)
            chk = Pn.items.pop(); Pn.until(("pub", i)); Pn.until(("ks", i, ENV("FHC", 30))); Pn.items.append(chk)
            Pn.atomic(lambda i=i: (push_h(i + 1), G.burst(2)), 0)
        sc = Sched(G, [E, Pn])
        acc = AC2[i & 1]
        for ks in range(48):
            u = 48 * i + ks
            nxt = []
            if ks + LA < 48:
                if (ks + LA) % 12 == 0: g2_sync(4 * i + (ks + LA) // 12)
                nxt = g2_reads(u + LA)
            if i == 0: G.need([("w", 2 * ks), ("w", 2 * ks + 1)])
            k.wait_lg(("fr", u))
            n = 0
            for tl in range(2):
                for mt in range(2):
                    a = acc + 8 * tl + 4 * mt; b = HB + 8 * (u % 4) + 4 * tl
                    k(f"v_mfma_f32_16x16x32_bf16 v[{a}:{a+3}], {wreg(2*ks+mt)}, v[{b}:{b+3}], " + ("0" if ks == 0 else f"v[{a}:{a+3}]"))
                    bud = ENV("BUD2", 3)
                    if n == 0 and nxt:
                        for rd in nxt: k(rd, tag=("fr", u + LA))
                        bud -= 2
                    if n == 3: bud -= 1; G.mark(("ks", i, ks))
                    sc.gap(bud); n += 1
        sc.flush()
        k.ts(f"mm{i}")
        part1(i)
        if i == 3:
            fh_poll(D0, 4, 0); push_h(4); G.burst(4)
            part2(D, 3, 0)
    assert not G.bg, G.bg
    if dbg:
        k("v_mbcnt_lo_u32_b32 v0, -1, 0\nv_mbcnt_hi_u32_b32 v0, -1, v0")
        k.ts_flush(24, WS_DBG + 65536); names.append(" ".join(k.tsn))
        open("ts_names.txt", "w").write("\n".join(names))
    k("s_endpgm")
    for f in slow: f()
    k(f"{END}:")
    return k

if __name__ == "__main__":
    import sys
    from gen_k01 import gen_k01
    dbg = len(sys.argv) > 1
    k1 = gen_k01(dbg, "Lk2_end", 112000); k2 = gen_k2(dbg)
    open(os.environ.get("OUT", "full.s"), "w").write(build([k1, k2], [k1, k2]))
    print("k01", k1.ninstr, k1.nnop, "k2", k2.ninstr, k2.nnop)
```

```python
import re

TRANS = ("v_exp_f32", "v_log_f32", "v_rcp_f32", "v_rsq_f32", "v_sqrt_f32", "v_sin_f32", "v_cos_f32", "v_rcp_iflag_f32")
_REG = re.compile(r"\b([vas])(\d+)\b|\b([vas])\[(\d+):(\d+)\]")

def regs_of(op):
    out = set()
    for m in _REG.finditer(op):
        if m.group(1):
            out.add((m.group(1), int(m.group(2))))
        else:
            for i in range(int(m.group(4)), int(m.group(5)) + 1):
                out.add((m.group(3), i))
    if re.search(r"\bvcc(_lo|_hi)?\b", op): out.add(("vcc", 0))
    if re.search(r"\bm0\b", op): out.add(("m0", 0))
    if re.search(r"\bexec(_lo|_hi)?\b", op): out.add(("exec", 0))
    return out

def split_ops(s):
    ops = []; depth = 0; cur = ""
    for ch in s:
        if ch == "[": depth += 1
        if ch == "]": depth -= 1
        if ch == "," and depth == 0:
            ops.append(cur.strip()); cur = ""
        else:
            cur += ch
    if cur.strip(): ops.append(cur.strip())
    return ops

class Ins:
    __slots__ = ("text", "mn", "kind", "wr", "rd", "passes", "srcc", "ab", "states", "dpp", "widestore", "sdata")
    def __init__(self, text):
        self.text = text
        t = text.split(";")[0].strip()
        parts = t.split(None, 1)
        mn = parts[0]; self.mn = mn
        rest = parts[1] if len(parts) > 1 else ""
        ops = split_ops(rest)
        self.wr = set(); self.rd = set(); self.passes = 0; self.srcc = set(); self.ab = set()
        self.states = 1; self.dpp = False; self.widestore = False; self.sdata = set()
        R = regs_of
        if mn == "s_nop":
            self.kind = "nop"; self.states = int(ops[0], 0) + 1
        elif mn.startswith("v_mfma"):
            self.kind = "mfma"
            self.passes = 8 if "32x32x16" in mn else 4
            self.wr = R(ops[0]); self.ab = R(ops[1]) | R(ops[2]); self.srcc = R(ops[3]); self.rd = self.ab | self.srcc
        elif mn.startswith("v_"):
            self.kind = "valu"
            self.dpp = ("_dpp" in mn) or ("quad_perm" in rest) or ("row_" in rest)
            if (mn.startswith("v_permlane") and "swap" in mn) or mn.startswith("v_swap"):
                self.wr = R(ops[0]) | R(ops[1]); self.rd = set(self.wr)
            elif mn.startswith("v_cmp"):
                self.wr = R(ops[0])
                for o in ops[1:]: self.rd |= R(o)
            elif mn.startswith(("v_add_co", "v_sub_co", "v_addc_co", "v_subb_co", "v_subrev_co")):
                self.wr = R(ops[0]) | R(ops[1])
                for o in ops[2:]: self.rd |= R(o)
            else:
                self.wr = R(ops[0])
                for o in ops[1:]: self.rd |= R(o)
                if mn.startswith(("v_fmac", "v_dot2c", "v_mac", "v_pk_fmac")) or self.dpp: self.rd |= self.wr
        elif mn.startswith("ds_"):
            self.kind = "ds"
            if mn.startswith(("ds_read", "ds_bpermute", "ds_permute", "ds_swizzle")):
                self.wr = R(ops[0])
                for o in ops[1:]: self.rd |= R(o)
            else:
                for o in ops: self.rd |= R(o)
        elif mn.startswith(("buffer_", "global_")):
            self.kind = "vmem"
            islds = bool(re.search(r"\blds\b", rest))
            if mn in ("buffer_wbl2", "buffer_inv"):
                pass
            elif "load" in mn and not islds:
                self.wr = R(ops[0])
                for o in ops[1:]: self.rd |= R(o)
            else:
                for o in ops: self.rd |= R(o)
                if islds: self.rd.add(("m0", 0))
                if "store" in mn and ("x3" in mn or "x4" in mn):
                    self.widestore = True
                    self.sdata = R(ops[0]) if mn.startswith("buffer") else R(ops[1])
                if "atomic" in mn and re.search(r"\bsc0\b", rest):
                    self.wr = R(ops[0])
        elif mn.startswith("s_"):
            self.kind = "salu"
            if mn.startswith(("s_waitcnt", "s_barrier", "s_branch", "s_cbranch", "s_sleep", "s_setprio", "s_endpgm", "s_cmp", "s_bitcmp")):
                for o in ops: self.rd |= R(o)
            else:
                if ops:
                    self.wr = R(ops[0])
                    for o in ops[1:]: self.rd |= R(o)
                if "saveexec" in mn: self.wr.add(("exec", 0))
        else:
            raise ValueError("unknown instr " + text)

def is_vec(r): return r[0] in ("v", "a")
def is_sc(r): return r[0] in ("s", "vcc")

def need(p, c):
    n = 0
    pv = {r for r in p.wr if is_vec(r)}
    if p.kind == "valu":
        if c.kind == "mfma" and pv & c.rd: n = max(n, 2)
        if c.kind == "valu":
            if p.mn.startswith(TRANS) and (pv & (c.rd | c.wr)): n = max(n, 1)
            if c.dpp and pv & c.rd: n = max(n, 2)
            if c.mn.startswith("v_permlane") and pv & c.rd: n = max(n, 2)
            if c.mn.startswith(("v_readfirstlane", "v_readlane")) and pv & c.rd: n = max(n, 1)
            if p.mn.startswith("v_dot") and (pv & (c.rd | c.wr)):
                n = max(n, 3)
            if "sdwa" in p.mn and pv & (c.rd | c.wr): n = max(n, 1)
        if p.mn.startswith(TRANS) and c.kind in ("ds", "vmem") and pv & c.rd: n = max(n, 1)
        if p.mn.startswith("v_dot") and c.kind in ("ds", "vmem", "mfma") and pv & c.rd: n = max(n, 3)
        ps = {r for r in p.wr if is_sc(r)}
        if ps:
            if c.kind == "valu" and ps & c.rd:
                n = max(n, 4 if c.mn.startswith(("v_readlane", "v_writelane")) else 2)
            if c.kind == "valu" and c.mn.startswith("v_cndmask") and ("vcc", 0) in ps: n = max(n, 2)
            if c.kind == "vmem" and ps & c.rd: n = max(n, 5)
            if c.kind == "salu" and ps & c.rd: n = max(n, 1)
    elif p.kind == "mfma":
        big = p.passes == 8
        if c.kind == "mfma":
            if pv & c.ab: n = max(n, 12 if big else 8)
            if pv & c.srcc:
                if not (c.srcc == pv and c.passes == p.passes): n = max(n, 10 if big else 6)
            if pv & c.wr and not (c.srcc == pv and c.passes == p.passes): n = max(n, 12 if big else 8)
        elif c.kind in ("valu", "ds", "vmem"):
            if pv & (c.rd | c.wr): n = max(n, 12 if big else 8)
            if c.kind == "valu" and (p.srcc & c.wr): n = max(n, 7 if big else 3)
            if c.kind in ("ds", "vmem") and (p.srcc & c.wr): n = max(n, 7 if big else 3)
    elif p.kind == "salu":
        if ("m0", 0) in p.wr and c.kind in ("vmem", "ds") and ("m0", 0) in c.rd: n = max(n, 1)
    elif p.kind == "vmem":
        if p.widestore and p.sdata & c.wr: n = max(n, 2)
    return n

class K:
    def __init__(self, name, grid, block, lds=0, vgpr=256, agpr=0, sgpr=102):
        self.name = name; self.grid = grid; self.block = block; self.lds = lds
        self.vgpr = vgpr; self.agpr = agpr; self.sgpr = sgpr
        self.lines = []
        self.hist = []
        self._lbl = 0
        self.vm = []
        self.lg = []
        self.nnop = 0
        self.issued = set()
        self.ninstr = 0
    def _emit(self, ln, tag=None):
        ins = Ins(ln)
        req = 0; dist = 0
        for p in reversed(self.hist):
            r = need(p, ins) - dist
            if r > req: req = r
            dist += p.states
            if dist > 14: break
        while req > 0:
            n = min(req, 16)
            nop = Ins(f"s_nop {n-1}")
            self.lines.append(f"    s_nop {n-1}"); self.hist.append(nop); req -= n; self.nnop += 1
        self.lines.append("    " + ln)
        self.hist.append(ins)
        self.ninstr += 1
        if len(self.hist) > 32: self.hist = self.hist[-32:]
        for (kind, n) in ins.wr | ins.rd:
            if kind == "v": assert n < self.vgpr, f"v{n} >= {self.vgpr}: {ln}"
            if kind == "a": assert n < self.agpr, f"a{n} >= {self.agpr}: {ln}"
            if kind == "s": assert n < self.sgpr, f"s{n}: {ln}"
        if ins.kind == "vmem": self.vm.append(("?", tag) if getattr(self, "guard", False) else tag)
        if ins.kind == "ds": self.lg.append(tag)
        if ins.kind in ("vmem", "ds") and tag is not None: self.issued.add(tag)
        if ins.mn == "s_waitcnt":
            m = re.search(r"vmcnt\((\d+)\)", ln)
            if m:
                n = int(m.group(1)); self.vm = self.vm[len(self.vm) - n:] if n < len(self.vm) and n > 0 else ([] if n == 0 else self.vm)
            m = re.search(r"lgkmcnt\((\d+)\)", ln)
            if m:
                n = int(m.group(1)); self.lg = self.lg[len(self.lg) - n:] if n < len(self.lg) and n > 0 else ([] if n == 0 else self.lg)
    def __call__(self, s, tag=None):
        for ln in s.strip("\n").split("\n"):
            ln = ln.strip()
            if not ln: continue
            if ln.startswith(";"):
                self.lines.append("    " + ln); continue
            if ln.endswith(":"):
                self.label(ln[:-1]); continue
            self._emit(ln, tag)
    def wait_vm(self, tag):
        assert tag in self.issued, f"wait_vm on never-issued tag {tag}"
        idx = [i for i, t in enumerate(self.vm) if t == tag or t == ("?", tag)]
        if not idx: return
        n = sum(1 for t in self.vm[idx[-1] + 1:] if not (isinstance(t, tuple) and t and t[0] == "?"))
        n = min(n, 63)
        keep = self.vm[idx[-1] + 1:]
        self(f"s_waitcnt vmcnt({n})")
        self.vm = keep if n > 0 else []
    def wait_lg(self, tag):
        assert tag in self.issued, f"wait_lg on never-issued tag {tag}"
        idx = [i for i, t in enumerate(self.lg) if t == tag]
        if not idx: return
        n = len(self.lg) - 1 - idx[-1]
        n = min(n, 15)
        self(f"s_waitcnt lgkmcnt({n})")
    def forget(self, pred):
        self.issued = {t for t in self.issued if not pred(t)}
    def label(self, l):
        self.lines.append(l + ":")
    def stamp(self, i):
        if getattr(self, "stb", None) is None: return
        self(f"s_memrealtime s[{self.stb+2*i}:{self.stb+2*i+1}]")
        self.nst = max(getattr(self, "nst", 0), i + 1)
    def stamp_flush(self, srd, soff_expr_reg, vtmp=0):
        if getattr(self, "stb", None) is None: return
        self("s_waitcnt lgkmcnt(0) vmcnt(0)")
        self.stamp(7)
        self("s_waitcnt lgkmcnt(0)")
        lbl = self.newlabel("Lst")
        self(f"v_cmp_eq_u32 vcc, 0, v0\ns_and_saveexec_b64 s[{self.stb+16}:{self.stb+17}], vcc\ns_cbranch_execz {lbl}")
        for i in range(8): self(f"v_mov_b32 v{8+i}, s{self.stb+2*i}")
        self(f"v_mov_b32 v1, 0\nbuffer_store_dwordx4 v[8:11], v1, s[{srd}:{srd+3}], s{soff_expr_reg} offen\nbuffer_store_dwordx4 v[12:15], v1, s[{srd}:{srd+3}], s{soff_expr_reg} offen offset:16")
        self(f"{lbl}:")
    def ts(self, name):
        if not getattr(self, "tl", False): return
        if not hasattr(self, "tsn"): self.tsn = []
        i = len(self.tsn)
        if i >= 63 and name != "end": return
        self.tsn.append(name)
        import os
        clk = "s_memtime" if os.environ.get("CYC") else "s_memrealtime"
        self(f"{clk} s[100:101]\ns_waitcnt lgkmcnt(0)\nv_writelane_b32 v1, s100, {i}")
    def ts_flush(self, srd, base):
        if not getattr(self, "tl", False): return
        self("s_waitcnt vmcnt(0)")
        self.ts("end")
        lbl = self.newlabel("Lts")
        self(f"s_cmp_lg_u32 s40, {getattr(self, 'tlwave', 0)}\ns_cbranch_scc1 {lbl}")
        self(f"s_lshl_b32 s100, s2, 8\ns_add_u32 s100, s100, {base}\nv_and_b32 v0, 63, v0\nv_lshlrev_b32 v0, 2, v0")
        self(f"buffer_store_dword v1, v0, s[{srd}:{srd+3}], s100 offen\n{lbl}:")
    def fence(self, n=12):
        self(f"s_nop {n-1}")
    def newlabel(self, p="L"):
        self._lbl += 1
        return f"{p}_{self.name}_{self._lbl}"
    def text(self):
        o = [f".globl {self.name}", ".p2align 8", f".type {self.name},@function", f"{self.name}:"]
        o += self.lines
        o.append("    s_endpgm")
        return "\n".join(o)
    def desc(self):
        acc = (self.vgpr + 3) // 4 * 4
        nfv = acc + self.agpr if self.agpr else self.vgpr
        return f""".p2align 6
.amdhsa_kernel {self.name}
  .amdhsa_next_free_vgpr {nfv}
  .amdhsa_next_free_sgpr {self.sgpr}
  .amdhsa_accum_offset {acc}
  .amdhsa_group_segment_fixed_size 0
  .amdhsa_kernarg_size 104
  .amdhsa_user_sgpr_count 2
  .amdhsa_user_sgpr_kernarg_segment_ptr 1
  .amdhsa_system_sgpr_workgroup_id_x 1
  .amdhsa_float_denorm_mode_32 3
  .amdhsa_float_denorm_mode_16_64 3
.end_amdhsa_kernel"""

HEADER = """; Kernarg layout for this problem (104 bytes, ptrs only, base s[0:1]):
"""

def build(launches, kernels):
    o = HEADER
    for k in launches:
        o += f"; @launch kernel={k.name} grid=({k.grid},1,1) block=({k.block},1,1) lds={k.lds}\n"
    o += '.amdgcn_target "amdgcn-amd-amdhsa--gfx950"\n.text\n'
    for k in kernels:
        o += k.text() + "\n"
    o += '.section .rodata,"a"\n'
    for k in kernels:
        o += k.desc() + "\n"
    return o
```

```python
from asmlib import *

WS_KT  = 0x0000000
WS_Y4  = 0x0300000
WS_W1P = 0x0600000
WS_W2P = 0x0A00000
WS_SQ  = 0x0C00000
WS_FL  = 0x0D00000
WS_FH  = 0x0E00000
WS_XN  = 0x1000000
WS_X3  = 0x1300000
WS_H1  = 0x1600000
WS_H2  = 0x1C00000
WS_X1  = 0x2400000
WS_YF  = 0x2700000
WS_ST  = 0x2200000
WS_ST2 = 0x2300000
WS_DBG = 0x8000000
WS_SIZE = 0x10000000
NB = 2048 * 640 * 2
FLS = 8
SPIN = 4000000

def srd(k, d, lo, hi, nbytes):
    k(f"s_mov_b32 s{d}, s{lo}\ns_mov_b32 s{d+1}, s{hi}\ns_mov_b32 s{d+2}, {nbytes}\ns_mov_b32 s{d+3}, 0x20000")
def unpack_lo(k, d, s): k(f"v_lshlrev_b32 v{d}, 16, v{s}")
def unpack_hi(k, d, s): k(f"v_and_b32 v{d}, 0xffff0000, v{s}")
def unpack(k, d, s, half): (unpack_hi if half else unpack_lo)(k, d, s)
def round2(k, a, b, t):
    k(f"v_cvt_pk_bf16_f32 v{t}, v{a}, v{b}")
    unpack_lo(k, a, t); unpack_hi(k, b, t)

def ln_scalars(k, s1, s2, t):
    inv = "0x3acccccd"
    k(f"""
    v_mul_f32 v{s1}, {inv}, v{s1}
    v_mul_f32 v{s2}, {inv}, v{s2}
    v_fma_f32 v{s2}, -v{s1}, v{s1}, v{s2}
    v_max_f32 v{s2}, 0, v{s2}
    """)
    round2(k, s1, s2, t)
    k(f"""
    v_add_f32 v{s2}, 0x3727c5ac, v{s2}
    v_cvt_pk_bf16_f32 v{t}, v{s2}, v{s2}
    v_lshlrev_b32 v{s2}, 16, v{t}
    v_sqrt_f32 v{s2}, v{s2}
    v_cvt_pk_bf16_f32 v{t}, v{s2}, v{s2}
    v_lshlrev_b32 v{s2}, 16, v{t}
    v_rcp_f32 v{s2}, v{s2}
    """)

S_WS = 24
S_DBG = 20
S_WAVE = 40
S_NONCE = 56
S_SPIN = 58
S_EX = 60

def nonce_publish(k, vt):
    l = k.newlabel("Lnp")
    k(f"""
    s_or_b32 s59, s2, s{S_WAVE}
    s_cmp_lg_u32 s59, 0
    s_cbranch_scc1 {l}
    s_memrealtime s[{S_NONCE}:{S_NONCE+1}]
    s_waitcnt lgkmcnt(0)
    s_or_b32 s{S_NONCE}, s{S_NONCE}, 1
    v_mov_b32 v{vt}, s{S_NONCE}
    v_mov_b32 v{vt+1}, s{S_NONCE+1}
    s_mov_b64 exec, 1
    buffer_store_dwordx2 v[{vt}:{vt+1}], off, s[{S_DBG}:{S_DBG+3}], 0 sc1
    s_mov_b64 exec, -1
    {l}:
    """)

def nonce_get(k, vt, abort):
    l = k.newlabel("Lng")
    k(f"""
    {l}:
    buffer_load_dwordx2 v[{vt}:{vt+1}], off, s[{S_DBG}:{S_DBG+3}], 0 sc1
    s_waitcnt vmcnt(0)
    v_readfirstlane_b32 s{S_NONCE}, v{vt}
    v_readfirstlane_b32 s{S_NONCE+1}, v{vt+1}
    s_sub_u32 s{S_SPIN}, s{S_SPIN}, 1
    s_cbranch_scc1 {abort}
    s_cmp_eq_u32 s{S_NONCE}, 0
    s_cbranch_scc1 {l}
    """)

def flag_set(k, vt, soff):
    k(f"""
    v_mov_b32 v{vt}, s{S_NONCE}
    v_mov_b32 v{vt+1}, s{S_NONCE+1}
    s_mov_b64 exec, 1
    buffer_store_dwordx2 v[{vt}:{vt+1}], off, s[{S_WS}:{S_WS+3}], s{soff} sc1
    s_mov_b64 exec, -1
    """)

def flag_wait(k, vt, vaddr, soff, nlanes, abort):
    l = k.newlabel("Lfw")
    mask = (1 << nlanes) - 1
    if nlanes == 64: k("s_mov_b64 exec, -1")
    elif nlanes <= 32: k(f"s_mov_b64 exec, {hex(mask)}")
    else: k(f"s_mov_b32 exec_lo, -1\ns_mov_b32 exec_hi, {hex(mask >> 32)}")
    k(f"""
    {l}:
    buffer_load_dwordx2 v[{vt}:{vt+1}], v{vaddr}, s[{S_WS}:{S_WS+3}], s{soff} offen sc1
    s_waitcnt vmcnt(0)
    s_sub_u32 s{S_SPIN}, s{S_SPIN}, 1
    s_cbranch_scc1 {abort}
    v_cmp_ne_u64 vcc, s[{S_NONCE}:{S_NONCE+1}], v[{vt}:{vt+1}]
    s_cbranch_vccnz {l}
    s_mov_b64 exec, -1
    """)
```

```python
from gen_common import *

HCP = 4160
UROFF = 4 * HCP
CP = UROFF + 4608
import os
STF = " sc1"
TLBW = int(os.environ.get("TLBW", "0"))
HWAIT = True
CLK = False

def prologue(k, endlbl):
    k(f"""
    s_cmp_ge_u32 s2, 256
    s_cbranch_scc1 {endlbl}
    """)
    if k.stb is not None:
        for i in range(8): k.stamp(i)
    k(f"""
    s_load_dwordx16 s[64:79], s[0:1], 0
    s_load_dwordx4 s[80:83], s[0:1], 64
    s_load_dwordx2 s[20:21], s[0:1], 88
    s_load_dwordx2 s[24:25], s[0:1], 96
    v_lshlrev_b32 v3, 4, v0                 ; tid*16
    """)

def prologue2(k):
    k(f"""
    v_lshrrev_b32 v1, 6, v0
    v_and_b32 v2, 63, v0                    ; lane
    v_readfirstlane_b32 s{S_WAVE}, v1
    s_mov_b32 s50, 0x05040100
    s_mov_b32 s51, 0x07060302
    s_mov_b32 s{S_SPIN}, {SPIN}
    s_mov_b32 s22, 256
    s_mov_b32 s23, 0x20000
    s_mov_b32 s26, {WS_SIZE}
    s_mov_b32 s27, 0x20000
    """)

def code_prefetch(k, start, end, nbytes, vt):
    n16 = (nbytes + 16383) // 16384
    k(f"""
    s_getpc_b64 s[28:29]
    Lpc_{k.name}:
    s_add_u32 s28, s28, {start}-Lpc_{k.name}
    s_addc_u32 s29, s29, -1
    s_mov_b32 s30, {end}-{start}
    s_mov_b32 s31, 0x20000
    s_lshr_b32 s3, s2, 3
    s_and_b32 s3, s3, 3
    s_lshl_b32 s3, s3, 12
    """)
    for i in range(n16):
        k(f"buffer_load_dwordx4 v[{vt}:{vt+3}], v3, s[28:31], s3 offen")
        if i < n16 - 1: k("s_add_u32 s3, s3, 16384")

def phase1(k, endlbl):
    lskip = k.newlabel("Lp1")
    k(f"""
    s_and_b32 s41, s2, 7                    ; cb
    s_lshr_b32 s42, s2, 3                   ; rb
    v_lshrrev_b32 v4, 4, v0
    v_min_u32 v4, 9, v4                     ; Gl
    v_and_b32 v5, 15, v0                    ; tql
    s_lshl_b32 s3, s42, 4
    v_add_u32 v6, s3, v5                    ; tq
    v_mul_u32_u24 v7, 5120, v6
    s_mul_i32 s3, s41, 160
    v_lshl_add_u32 v7, v4, 4, v7
    v_add_u32 v7, s3, v7
    s_mov_b32 s5, 0x7fffff00
    v_subrev_u32 v56, 3840, v7
    v_subrev_u32 v57, 2560, v7
    v_subrev_u32 v58, 1280, v7
    v_min_u32 v56, s5, v56
    v_min_u32 v57, s5, v57
    v_min_u32 v58, s5, v58
    s_mul_i32 s3, s41, 640
    v_lshlrev_b32 v59, 6, v4
    v_add_u32 v59, s3, v59
    """)
    prologue2(k)
    k("s_waitcnt lgkmcnt(0)")
    srd(k, 8, 66, 67, NB); srd(k, 12, 68, 69, NB); srd(k, 16, 70, 71, 640 * 8)
    nonce_publish(k, 8)
    k.vm = []
    if TLBW:
        lt = k.newlabel("Ltw")
        k(f"""
        s_cmp_lg_u32 s{S_WAVE}, 3
        s_cbranch_scc1 {lt}
        s_load_dwordx2 s[36:37], s[0:1], 80
        v_lshlrev_b32 v8, {TLBW}, v2
        """)
        nst = (0x3000000 >> (TLBW + 6)) or 1
        k("s_mov_b32 s3, 0")
        for i in range(nst):
            k(f"buffer_load_dword v244, v8, s[24:27], s3 offen\ns_add_u32 s3, s3, {64 << TLBW}")
        k("s_mov_b32 s30, 2621440\ns_mov_b32 s31, 0x20000\nv_lshlrev_b32 v8, 16, v2")
        for p in (64, 72):
            k(f"s_mov_b32 s28, s{p}\ns_mov_b32 s29, s{p+1}\nbuffer_load_dword v244, v8, s[28:31], 0 offen")
        k("s_waitcnt lgkmcnt(0)\ns_mov_b32 s28, s36\ns_mov_b32 s29, s37\nbuffer_load_dword v244, v8, s[28:31], 0 offen")
        k("s_mov_b32 s30, 1966080")
        for p in (78, 80, 82):
            k(f"s_mov_b32 s28, s{p}\ns_mov_b32 s29, s{p+1}\nbuffer_load_dword v244, v8, s[28:31], 0 offen")
        k(f"s_branch {lskip}\n{lt}:")
        k.vm = []
    else:
        lt = k.newlabel("Ltw")
        k(f"s_cmp_lg_u32 s{S_WAVE}, 3\ns_cbranch_scc1 {lt}")
        start, end, nbytes = k.cpf
        k(f"""
        s_getpc_b64 s[28:29]
        Lpc_{k.name}:
        s_add_u32 s28, s28, {start}-Lpc_{k.name}
        s_addc_u32 s29, s29, -1
        s_mov_b32 s30, {end}-{start}
        s_mov_b32 s31, 0x20000
        s_lshr_b32 s3, s2, 3
        s_and_b32 s3, s3, 15
        s_lshl_b32 s3, s3, 10
        v_lshlrev_b32 v8, 4, v2
        """)
        for i in range((nbytes + 16383) // 16384):
            k(f"buffer_load_dwordx4 v[240:243], v8, s[28:31], s3 offen\ns_add_u32 s3, s3, 16384")
        k(f"s_branch {lskip}\n{lt}:")
        k.vm = []
    k("""
    buffer_load_dwordx4 v[108:111], v59, s[16:19], 0 offen
    buffer_load_dwordx4 v[112:115], v59, s[16:19], 0 offen offset:16
    buffer_load_dwordx4 v[116:119], v59, s[16:19], 0 offen offset:32
    buffer_load_dwordx4 v[120:123], v59, s[16:19], 0 offen offset:48
    """, tag="sh")
    k("""
    buffer_load_dwordx4 v[76:79], v7, s[8:11], 0 offen
    buffer_load_dwordx4 v[80:83], v7, s[8:11], 0 offen offset:1280
    buffer_load_dwordx4 v[84:87], v7, s[8:11], 0 offen offset:2560
    buffer_load_dwordx4 v[88:91], v7, s[8:11], 0 offen offset:3840
    buffer_load_dwordx4 v[92:95], v7, s[12:15], 0 offen
    buffer_load_dwordx4 v[96:99], v7, s[12:15], 0 offen offset:1280
    buffer_load_dwordx4 v[100:103], v7, s[12:15], 0 offen offset:2560
    buffer_load_dwordx4 v[104:107], v7, s[12:15], 0 offen offset:3840
    buffer_load_dwordx4 v[64:67], v56, s[8:11], 0 offen
    buffer_load_dwordx4 v[68:71], v57, s[8:11], 0 offen
    buffer_load_dwordx4 v[72:75], v58, s[8:11], 0 offen
    """, tag="kv")
    k(f"""
    v_lshlrev_b32 v63, 15, v4               ; 2Gl*16384
    v_lshl_add_u32 v63, v6, 4, v63          ; + tq*16
    s_mul_i32 s3, s41, {20*16384}
    s_add_u32 s36, s3, {WS_KT}
    s_add_u32 s37, s3, {WS_KT + 8192}
    s_add_u32 s38, s3, {WS_KT + 16384}
    s_add_u32 s39, s3, {WS_KT + 24576}
    """)
    k.wait_vm("sh")
    SH = 124
    for p in range(4):
        for j in range(4):
            unpack(k, SH + 8 * p + 2 * j, 108 + 2 * (2 * p) + (j >> 1), j & 1)
            unpack(k, SH + 8 * p + 2 * j + 1, 108 + 2 * (2 * p + 1) + (j >> 1), j & 1)
    k("s_waitcnt vmcnt(0)")
    k.stamp(1)
    for p in range(4):
        for rho in range(7):
            unpack_lo(k, 8 + 2 * rho, 64 + 4 * rho + p); unpack_hi(k, 9 + 2 * rho, 64 + 4 * rho + p)
        for i in range(4):
            a = 32 + 2 * i
            unpack_lo(k, 30, 92 + 4 * i + p); unpack_hi(k, 31, 92 + 4 * i + p)
            k(f"v_pk_mul_f32 v[{a}:{a+1}], v[{8+2*i}:{9+2*i}], v[{SH+8*p+6}:{SH+8*p+7}]")
            for j in (2, 1, 0):
                rho = i + 3 - j
                k(f"v_pk_fma_f32 v[{a}:{a+1}], v[{8+2*rho}:{9+2*rho}], v[{SH+8*p+2*j}:{SH+8*p+2*j+1}], v[{a}:{a+1}]")
            k(f"v_pk_mul_f32 v[{a}:{a+1}], v[{a}:{a+1}], v[30:31]")
        for e in range(2):
            c = 2 * p + e
            k(f"v_cvt_pk_bf16_f32 v{40+2*c}, v{38+e}, v{36+e}\nv_cvt_pk_bf16_f32 v{41+2*c}, v{34+e}, v{32+e}")
        k(f"buffer_store_dwordx4 v[{40+4*p}:{43+4*p}], v63, s[24:27], s{36+p} offen sc1", tag="kts")
    k(f"{lskip}:")
    k.hist = []

def p1_signal(k, endlbl, nafter):
    lw = k.newlabel("Lcw"); l3 = k.newlabel("Lc3")
    k(f"""
    s_cmp_lg_u32 s{S_WAVE}, 3
    s_cbranch_scc1 {l3}
    """)
    sv = list(k.vm)
    nonce_get(k, 16, endlbl)
    k.vm = sv
    k(f"""
    {l3}:
    s_waitcnt vmcnt({nafter})
    s_barrier
    """)
    k.stamp(2)
    k(f"""
    s_cmp_lg_u32 s{S_WAVE}, 3
    s_cbranch_scc1 {lw}
    s_lshl_b32 s6, s41, 5
    s_add_u32 s6, s6, s42
    s_lshl_b32 s6, s6, {FLS}
    s_add_u32 s6, s6, {WS_FL}
    """)
    sv = list(k.vm)
    flag_set(k, 16, 6)
    k.vm = sv
    k(f"{lw}:")

def conv_role(k, endlbl):
    k(f"""
    s_mul_i32 s46, s41, 20
    s_add_u32 s46, s46, s42                 ; g4
    s_lshl_b32 s43, s46, 2
    s_add_u32 s43, s43, s{S_WAVE}
    s_lshl_b32 s4, s43, 12
    s_add_u32 s32, s72, s4
    s_addc_u32 s33, s73, 0
    s_mov_b32 s34, 4096
    s_mov_b32 s35, 0x20000
    v_lshlrev_b32 v60, 4, v2                ; lane*16
    v_subrev_u32 v61, 32, v60
    v_subrev_u32 v62, 16, v60
    v_min_u32 v61, s5, v61
    v_min_u32 v62, s5, v62
    """)
    k.vm = []
    lh3 = k.newlabel("Lh3")
    def hloads():
        for rho in range(4):
            w = 160 + 8 * rho
            k(f"buffer_load_dwordx4 v[{w}:{w+3}], v60, s[32:35], 0 offen offset:{1024*rho}\nbuffer_load_dwordx2 v[{w+4}:{w+5}], v60, s[32:35], 0 offen offset:{1024*rho+16}", tag="h")
        k("buffer_load_dwordx4 v[192:195], v61, s[32:35], 0 offen\nbuffer_load_dwordx2 v[196:197], v62, s[32:35], 0 offen", tag="h")
    hloads()
    k(f"""
    s_lshl_b32 s4, s43, 1
    s_and_b32 s4, s4, -4
    s_load_dword s44, s[74:75], s4          ; D pair
    s_mul_i32 s45, s{S_WAVE}, {CP}
    v_and_b32 v8, 15, v2                    ; n / m
    v_lshrrev_b32 v9, 4, v2                 ; kq / q
    """)
    p1_signal(k, endlbl, 10)
    k(f"""
    v_mov_b32 v12, 0
    v_mov_b32 v13, 0
    v_mov_b32 v14, 0
    v_mov_b32 v15, 0
    v_and_b32 v10, 31, v2
    v_lshlrev_b32 v10, 4, v10
    v_add_u32 v10, s45, v10
    ds_write_b128 v10, v[12:15] offset:{UROFF + 4096}
    v_add_u32 v18, 1, v8                    ; m+1
    v_and_b32 v19, 3, v18                   ; e
    v_sub_u32 v18, v18, v19
    v_lshl_add_u32 v18, v9, 3, v18
    v_lshlrev_b32 v18, 1, v18
    v_mul_u32_u24 v19, {HCP}, v19
    v_add3_u32 v228, v18, v19, s45          ; vA
    v_lshlrev_b32 v18, 5, v8
    v_sub_u32 v18, {UROFF + 480}, v18
    v_lshl_add_u32 v18, v9, 4, v18
    v_add_u32 v229, s45, v18                ; vB
    v_lshlrev_b32 v19, 3, v0
    v_sub_u32 v230, {UROFF + 4088 - 2048}, v19
    v_add_u32 v231, {2*CP}, v230
    v_lshlrev_b32 v232, 5, v8
    v_lshl_add_u32 v232, v9, 3, v232
    v_add_u32 v232, s45, v232
    v_lshlrev_b32 v233, 2, v0
    v_add_u32 v234, {2*CP}, v233
    v_lshlrev_b32 v235, {FLS}, v2
    v_add_u32 v236, s45, v60
    s_waitcnt lgkmcnt(0)
    s_and_b32 s4, s43, 1
    s_lshl_b32 s4, s4, 4
    s_lshr_b32 s44, s44, s4
    s_and_b32 s44, s44, 0xffff              ; D bits
    v_lshl_add_u32 v18, v9, 3, v8
    v_sub_u32 v18, 15, v18                  ; j*
    v_and_b32 v19, 1, v18
    v_lshlrev_b32 v19, 4, v19
    v_lshlrev_b32 v19, v19, s44
    v_lshrrev_b32 v18, 1, v18
    """)
    for e in range(4):
        k(f"v_cmp_eq_u32 vcc, {e}, v18\nv_cndmask_b32 v{224+e}, 0, v19, vcc")
    k("s_waitcnt vmcnt(0)")
    for rho in range(5):
        w = 160 + 8 * rho; off = 32 + 1024 * rho if rho < 4 else 0
        t = 64 + 12 * rho
        k(f"ds_write_b128 v236, v[{w}:{w+3}] offset:{off}")
        for i in range(4): k(f"v_alignbyte_b32 v{t+i}, v{w+i+1}, v{w+i}, 2")
        k(f"ds_write_b128 v236, v[{t}:{t+3}] offset:{off + HCP}")
        for i in range(4): k(f"v_mov_b32 v{t+4+i}, v{w+1+i}")
        k(f"ds_write_b128 v236, v[{t+4}:{t+7}] offset:{off + 2*HCP}")
        for i in range(4): k(f"v_alignbyte_b32 v{t+8+i}, v{w+i+2}, v{w+i+1}, 2")
        k(f"ds_write_b128 v236, v[{t+8}:{t+11}] offset:{off + 3*HCP}")
    lw = k.newlabel("Lcw")
    k(f"""
    s_lshl_b32 s47, s46, 14                 ; g4*16384
    s_add_u32 s36, s47, {WS_KT}
    s_lshl_b32 s7, s41, {5+FLS}
    s_add_u32 s7, s7, {WS_FL}
    s_cmp_lg_u32 s{S_WAVE}, 3
    s_cbranch_scc1 {lw}
    """)
    flag_wait(k, 16, 235, 7, 32, endlbl)
    k(f"{lw}:")
    k("s_barrier")
    k.stamp(3)
    k.vm = []
    for i in range(4):
        k(f"buffer_load_dwordx4 v[{208+4*i}:{211+4*i}], v3, s[24:27], s36 offen sc1", tag=("kt", i))
        if i < 3: k("s_add_u32 s36, s36, 4096")
    ACC = 32
    def bufA(p, b): return 64 + 64 * p + 4 * b
    def bufB(p, a): return 96 + 64 * p + 4 * a
    def rdA(r, x):
        a = bufA(r & 1, x)
        return [f"ds_read_b64 v[{a}:{a+1}], v228 offset:{512*x + 64*r}", f"ds_read_b64 v[{a+2}:{a+3}], v228 offset:{512*x + 64*r + 8}"]
    def rdB(r, x):
        b = bufB(r & 1, x)
        return [f"ds_read_b128 v[{b}:{b+3}], v229 offset:{512*(7-x) + 64*r}"]
    k("s_waitcnt lgkmcnt(0)")
    for x in range(8):
        for rd in rdA(0, x): k(rd)
    for i in range(4):
        k.wait_vm(("kt", i))
        for e in range(2):
            k(f"ds_write_b64 v{230 + (i>>1)}, v[{208+4*i+2*e}:{209+4*i+2*e}] offset:{e*CP + 2048*(1-(i&1))}")
    k("s_waitcnt lgkmcnt(0)\ns_barrier")
    k.stamp(4)
    k("s_waitcnt lgkmcnt(0)")
    pairs = sorted([(b, a) for b in range(8) for a in range(8) if a + b <= 7], key=lambda t: (max(t), t))
    pairs0 = sorted([(b, a) for b in list(range(8)) + ["D"] for a in range(8) if b == "D" or a + b <= 7], key=lambda t: t[1])
    for x in range(8):
        for rd in rdB(0, x): k(rd, tag=("r", 0, x))
    started = set()
    NR = 8
    for r in range(NR):
        nxt = []
        if r < NR - 1:
            for x in range(8): nxt += rdA(r + 1, x) + rdB(r + 1, x)
        p = r & 1
        plist = pairs0 if r == 0 else pairs
        for n, (b, a) in enumerate(plist):
            if r == 0:
                k.wait_lg(("r", 0, a))
            elif n == 0:
                k("s_waitcnt lgkmcnt(0)")
            i = a + b if b != "D" else a
            c = f"v[{ACC+4*i}:{ACC+4*i+3}]" if i in started else "0"
            started.add(i)
            areg = bufA(p, b) if b != "D" else 224
            k(f"v_mfma_f32_16x16x32_bf16 v[{ACC+4*i}:{ACC+4*i+3}], v[{areg}:{areg+3}], v[{bufB(p,a)}:{bufB(p,a)+3}], {c}")
            if r == 0 and n == 8: k.wait_lg(("r", 0, 7))
            if nxt and (r > 0 or n >= 8): k(nxt.pop(0), tag=("r", r + 1))
        while nxt: k(nxt.pop(0), tag=("r", r + 1))
    k.stamp(5)
    k(f"s_add_u32 s37, s47, {WS_Y4}")
    for t in range(8):
        a = ACC + 4 * t
        k(f"v_cvt_pk_bf16_f32 v{64+2*t}, v{a}, v{a+1}\nv_cvt_pk_bf16_f32 v{65+2*t}, v{a+2}, v{a+3}")
        k(f"ds_write_b64 v232, v[{64+2*t}:{65+2*t}] offset:{512*t}")
    k("s_waitcnt lgkmcnt(0)\ns_barrier")
    for i in range(4):
        for c in range(4): k(f"ds_read_b32 v{96+4*i+c}, v{233 if c < 2 else 234} offset:{(c&1)*CP + 1024*i}", tag=("ys", i))
    for i in range(4):
        Y = 96 + 4 * i; oy = 128 + 4 * i
        k.wait_lg(("ys", i))
        for tk in range(2):
            sel = "s51" if tk else "s50"
            k(f"v_perm_b32 v{oy+2*tk}, v{Y+1}, v{Y}, {sel}\nv_perm_b32 v{oy+2*tk+1}, v{Y+3}, v{Y+2}, {sel}")
        k(f"buffer_store_dwordx4 v[{oy}:{oy+3}], v3, s[24:27], s37 offen{STF}")
        if i < 3: k("s_add_u32 s37, s37, 4096")
    k.stamp(6)

def transp_lds(k, src, offs):
    for ci in range(8):
        sel = "s51" if ci & 1 else "s50"
        o = 192 + 4 * ci
        for e in range(4):
            k(f"v_perm_b32 v{o+e}, v{src+4*(2*e+1)+(ci>>1)}, v{src+4*(2*e)+(ci>>1)}, {sel}")
        av, off = offs[ci]
        k(f"ds_write_b128 v{av}, v[{o}:{o+3}] offset:{off}")

QTP = 528
FRP = 1040
def helper_role(k, endlbl):
    lq, lsn, lw2, lq2, lsn2, lw3 = [k.newlabel("Lh") for _ in range(6)]
    k(f"""
    s_sub_u32 s43, s2, 160                  ; bw
    s_lshl_b32 s44, s43, 2
    s_add_u32 s44, s44, s{S_WAVE}           ; Wv
    v_and_b32 v8, 15, v2
    v_lshrrev_b32 v9, 4, v2                 ; kq
    v_lshlrev_b32 v238, 4, v2               ; lane*16
    s_mul_i32 s45, s{S_WAVE}, {16*FRP}
    v_add_u32 v239, s45, v238
    v_lshlrev_b32 v235, {FLS}, v2
    """)
    k.vm = []
    p1_signal(k, endlbl, 0)
    k.vm = []
    k(f"s_cmp_ge_u32 s43, 60\ns_cbranch_scc1 {lq}")
    srd(k, 8, 78, 79, 640 * 1536 * 2); srd(k, 16, 80, 81, 640 * 1536 * 2)
    k(f"""
    s_mul_i32 s52, s44, 171
    s_lshr_b32 s52, s52, 11
    s_mul_i32 s3, s52, 12
    s_sub_u32 s53, s44, s3                  ; fg
    s_mul_i32 s7, s52, {32*3072}
    s_lshl_b32 s3, s53, 8
    s_add_u32 s7, s7, s3
    v_mul_u32_u24 v16, {8*3072}, v9
    v_lshl_add_u32 v16, v8, 4, v16
    """)
    for j in range(8):
        k(f"buffer_load_dwordx4 v[{32+4*j}:{35+4*j}], v16, s[8:11], s7 offen")
        k(f"buffer_load_dwordx4 v[{64+4*j}:{67+4*j}], v16, s[16:19], s7 offen")
        if j < 7: k(f"s_add_u32 s7, s7, 3072")
    k(f"s_branch {lw2}\n{lq}:\ns_cmp_ge_u32 s43, 92\ns_cbranch_scc1 {lw2}")
    srd(k, 16, 64, 65, NB)
    k(f"""
    s_sub_u32 s3, s44, 240
    s_lshl_b32 s3, s3, 4
    v_lshrrev_b32 v7, 3, v2
    v_add_u32 v4, s3, v7                    ; row (h=0)
    v_mul_u32_u24 v5, 1280, v4
    v_and_b32 v6, 7, v2                     ; part
    v_lshl_add_u32 v5, v6, 4, v5
    s_movk_i32 s7, 10240
    """)
    for h in range(2):
        for i in range(10): k(f"buffer_load_dwordx4 v[{16+40*h+4*i}:{19+40*h+4*i}], v5, s[16:19], {'s7' if h else '0'} offen offset:{128*i}")
    k(f"{lw2}:\ns_nop 1")
    srd(k, 12, 82, 83, 1536 * 640 * 2)
    R = 96
    k(f"""
    s_lshr_b32 s46, s44, 3                  ; kstep
    s_and_b32 s47, s44, 7                   ; ct2
    s_mul_i32 s3, s46, 171
    s_lshr_b32 s3, s3, 9                    ; ct
    s_mul_i32 s4, s3, 3
    s_sub_u32 s4, s46, s4                   ; g
    s_mul_i32 s5, s3, {96*1280}
    s_mul_i32 s7, s47, 160
    s_add_u32 s5, s5, s7
    s_add_u32 s48, s5, 10240
    s_add_u32 s49, s5, 20480
    s_lshl_b32 s4, s4, 2
    v_add_u32 v10, s4, v9
    v_mul_u32_u24 v11, 171, v10
    v_lshrrev_b32 v11, 9, v11               ; w = rho/3
    v_mul_u32_u24 v12, 3, v11
    v_sub_u32 v12, v10, v12                 ; q'
    v_mul_u32_u24 v11, {24*1280}, v11
    v_min_u32 v14, 9, v8                    ; u
    v_lshl_add_u32 v11, v14, 4, v11
    v_mul_u32_u24 v15, 2560, v12
    v_add_u32 v15, v15, v11                 ; base1
    v_mul_u32_u24 v13, 10240, v12
    v_add_u32 v13, v13, v11
    v_add_u32 v13, {6*1280}, v13            ; base2
    buffer_load_dwordx4 v[{R}:{R+3}], v15, s[12:15], s5 offen
    buffer_load_dwordx4 v[{R+4}:{R+7}], v15, s[12:15], s5 offen offset:1280
    buffer_load_dwordx4 v[{R+8}:{R+11}], v15, s[12:15], s48 offen
    buffer_load_dwordx4 v[{R+12}:{R+15}], v15, s[12:15], s48 offen offset:1280
    buffer_load_dwordx4 v[{R+16}:{R+19}], v15, s[12:15], s49 offen
    buffer_load_dwordx4 v[{R+20}:{R+23}], v15, s[12:15], s49 offen offset:1280
    buffer_load_dwordx4 v[{R+24}:{R+27}], v13, s[12:15], s5 offen
    buffer_load_dwordx4 v[{R+28}:{R+31}], v13, s[12:15], s5 offen offset:1280
    s_cmp_ge_u32 s43, 60
    s_cbranch_scc1 {lq2}
    v_mul_u32_u24 v17, {FRP}, v8
    v_lshl_add_u32 v17, v9, 8, v17
    v_add_u32 v17, s45, v17
    s_waitcnt vmcnt(8)
    """)
    k.stamp(3)
    transp_lds(k, 32, [(17, 64 * (fi >> 1) + 16 * (fi & 1)) for fi in range(8)])
    transp_lds(k, 64, [(17, 64 * (fi >> 1) + 16 * (fi & 1) + 32) for fi in range(8)])
    k("s_waitcnt lgkmcnt(0)")
    for f in range(16): k(f"ds_read_b128 v[{32+4*f}:{35+4*f}], v239 offset:{f*FRP}", tag=("f", f))
    k(f"s_lshl_b32 s54, s53, 4\ns_mul_i32 s55, s52, 3072\ns_add_u32 s55, s55, {WS_W1P}")
    for f in range(16):
        k(f"""
        s_add_u32 s3, s54, {f}                  ; fo
        s_mul_i32 s4, s3, 171
        s_lshr_b32 s4, s4, 9                    ; cw
        s_mul_i32 s5, s4, {57*1024}
        s_lshl_b32 s3, s3, 10
        s_add_u32 s3, s3, s5
        s_add_u32 s3, s3, s55
        """)
        k.wait_lg(("f", f))
        k(f"buffer_store_dwordx4 v[{32+4*f}:{35+4*f}], v238, s[24:27], s3 offen{STF}")
    k(f"s_waitcnt vmcnt(16)\ns_branch {lw3}\n{lq2}:")
    k(f"s_waitcnt vmcnt(0)\ns_cmp_ge_u32 s43, 92\ns_cbranch_scc1 {lw3}")
    k("s_mov_b32 s3, 0x3f803f80")
    k.stamp(3)
    for h in range(2):
        A = 176 + 4 * h
        for i in range(10):
            for d in range(4):
                r = 16 + 40 * h + 4 * i + d
                first = i == 0 and d < 2
                k(f"v_dot2_f32_bf16 v{A+2*(d&1)}, v{r}, s3, " + ("0" if first else f"v{A+2*(d&1)}"))
                k(f"v_dot2_f32_bf16 v{A+1+2*(d&1)}, v{r}, v{r}, " + ("0" if first else f"v{A+1+2*(d&1)}"))
    for h in range(2):
        A = 176 + 4 * h
        k(f"v_add_f32 v{A}, v{A}, v{A+2}\nv_add_f32 v{A+1}, v{A+1}, v{A+3}")
    for mod in ("quad_perm:[1,0,3,2]", "quad_perm:[2,3,0,1]", "row_half_mirror"):
        for r in (176, 177, 180, 181): k(f"v_add_f32_dpp v{r}, v{r}, v{r} {mod} row_mask:0xf bank_mask:0xf")
    for h in range(2):
        A = 176 + 4 * h
        ln_scalars(k, A, A + 1, A + 2)
        k(f"v_mul_f32 v{A}, v{A}, v{A+1}")
    k(f"""
    v_lshlrev_b32 v4, 3, v4
    s_mov_b32 s3, {WS_SQ}
    s_mov_b32 exec_lo, 0x01010101
    s_mov_b32 exec_hi, 0x01010101
    buffer_store_dwordx2 v[176:177], v4, s[24:27], s3 offen
    buffer_store_dwordx2 v[180:181], v4, s[24:27], s3 offen offset:64
    s_mov_b64 exec, -1
    """)
    k(f"{lw3}:\ns_nop 1")
    k.stamp(4)
    k(f"""
    v_lshrrev_b32 v19, 2, v14
    v_mul_u32_u24 v19, {2*FRP}, v19
    v_and_b32 v20, 3, v14
    v_cmp_le_u32 vcc, 8, v14
    v_lshlrev_b32 v21, 6, v20
    v_lshlrev_b32 v22, 7, v20
    v_cndmask_b32 v21, v21, v22, vcc
    v_add_u32 v19, v19, v21
    v_mov_b32 v21, {FRP}
    v_cndmask_b32 v21, v21, 64, vcc
    v_lshl_add_u32 v19, v9, 8, v19
    v_add_u32 v24, s45, v19
    v_add_u32 v25, v24, v21
    s_mul_i32 s3, s47, 48
    s_add_u32 s3, s3, s46
    s_mul_i32 s3, s3, 5120
    s_add_u32 s3, s3, {WS_W2P}
    s_add_u32 s4, s3, 4096
    s_waitcnt lgkmcnt(0)
    """)
    transp_lds(k, R, [(24 if di < 4 else 25, 16 * (di & 3)) for di in range(8)])
    k("s_waitcnt lgkmcnt(0)")
    for f in range(5): k(f"ds_read_b128 v[{128+4*f}:{131+4*f}], v239 offset:{f*FRP}", tag=("g", f))
    for f in range(5):
        k.wait_lg(("g", f))
        if f < 4: k(f"buffer_store_dwordx4 v[{128+4*f}:{131+4*f}], v238, s[24:27], s3 offen offset:{1024*f}{STF}")
        else: k(f"buffer_store_dwordx4 v[{128+4*f}:{131+4*f}], v238, s[24:27], s4 offen{STF}")
    if not L2PF:
        k.stamp(6); return
    lp = k.newlabel("Lhp")
    k(f"""
    s_waitcnt vmcnt(0)
    s_barrier
    """)
    k.stamp(5)
    k(f"""
    s_cmp_lg_u32 s{S_WAVE}, 3
    s_cbranch_scc1 {lp}
    s_lshl_b32 s3, s43, {FLS}
    s_add_u32 s3, s3, {WS_FL + ((256 + 64) << FLS)}
    """)
    flag_set(k, 180, 3)
    k(f"s_mov_b32 s3, {WS_FL + ((256 + 64) << FLS)}")
    flag_wait(k, 180, 235, 3, 64, endlbl)
    k(f"s_mov_b32 s3, {WS_FL + ((256 + 128) << FLS)}")
    flag_wait(k, 180, 235, 3, 32, endlbl)
    k(f"""
    {lp}:
    s_barrier
    s_and_b32 s3, s2, 3
    s_mul_i32 s4, s3, {960*1024}
    s_lshr_b32 s5, s43, 3
    s_mul_i32 s5, s5, {80*1024}
    s_add_u32 s4, s4, s5
    s_add_u32 s4, s4, {WS_W1P}
    s_and_b32 s3, s2, 1
    s_mul_i32 s6, s3, {960*1024}
    s_add_u32 s6, s6, s5
    s_add_u32 s6, s6, {WS_W2P}
    """)
    for base in (4, 6):
        for i in range(20):
            k(f"buffer_load_dwordx4 v[{32+4*i}:{35+4*i}], v3, s[24:27], s{base} offen sc1")
            if i < 19: k(f"s_add_u32 s{base}, s{base}, 4096")
    k.stamp(6)

L2PF = False
def gen_k01(dbg=False, code_end="Lk01_end", code_bytes=20000):
    k = K("k01_kernel", 256, 256, lds=4 * CP, vgpr=256, sgpr=102)
    k.stb = 84 if dbg else None
    prologue(k, "Lk01_end")
    k.cpf = ("k01_kernel", code_end, code_bytes)
    phase1(k, "Lk01_end")
    k("s_cmp_ge_u32 s2, 160\ns_cbranch_scc1 Lk01_help")
    conv_role(k, "Lk01_end")
    k("s_branch Lk01_fin")
    k.hist = []; k.vm = []; k.lg = []
    k("Lk01_help:")
    helper_role(k, "Lk01_end")
    k("Lk01_fin:")
    if dbg:
        k(f"s_lshl_b32 s62, s2, 5\ns_add_u32 s62, s62, {WS_DBG}")
        k.stamp_flush(24, 62)
    k("Lk01_end:")
    return k

if __name__ == "__main__":
    import sys
    CLK = len(sys.argv) > 2
    k = gen_k01(len(sys.argv) > 1)
    open("k01.s", "w").write(build([k], [k]))
    print("k01", k.ninstr, k.nnop)
```

```python
from asmlib import *

def cost_of(ln):
    mn = ln.split()[0]
    if mn.startswith(TRANS): return 2
    if mn.startswith(("buffer_", "global_")): return 2
    if mn.startswith("v_dot"): return 2
    if mn.startswith("v_mfma"): return 2
    return 1

class Rec:
    def __init__(self, k): self.k = k; self.items = []
    def __call__(self, s, tag=None):
        for ln in s.strip("\n").split("\n"):
            ln = ln.strip()
            if not ln or ln.startswith(";"): continue
            assert not ln.endswith(":") and "branch" not in ln, ln
            self.items.append((cost_of(ln), (lambda ln=ln, tag=tag: self.k(ln, tag))))
    def wait_vm(self, tag): self.items.append((1, lambda: self.k.wait_vm(tag)))
    def wait_lg(self, tag): self.items.append((1, lambda: self.k.wait_lg(tag)))
    def atomic(self, fn, cost=2): self.items.append((cost, fn))
    def hold(self, n): self.items.append(("hold", n))
    def until(self, key): self.items.append(("until", key))
    def ts(self, name): self.items.append((1, lambda: self.k.ts(name)))
    def newlabel(self, p): return self.k.newlabel(p)

class Glob:
    def __init__(self, k, pace=16):
        self.k = k; self.bg = []; self.done = set(); self.t = 0; self.last = -100; self.pace = pace
    def mark(self, key): self.done.add(key)
    def push(self, tag, fn, cond=None): self.bg.append((tag, cond, fn))
    def first(self):
        for i, (tag, cond, fn) in enumerate(self.bg):
            if cond is None or cond in self.done: return i
        return None
    def ready(self): return self.first() is not None
    def emit(self):
        i = self.first()
        assert i is not None, self.bg[:3]
        tag, cond, fn = self.bg.pop(i)
        n0 = self.k.ninstr; fn(); self.last = self.t
        return self.k.ninstr - n0
    def tick(self, n):
        self.t += n
        if self.t - self.last >= self.pace and self.ready(): return self.emit()
        return 0
    def need(self, tags):
        if not isinstance(tags, list): tags = [tags]
        for tag in tags:
            while tag not in self.k.issued: self.emit()
        idx = [i for i, t in enumerate(self.k.vm) if t in tags or (isinstance(t, tuple) and len(t) == 2 and t[0] == "?" and t[1] in tags)]
        if idx:
            t = self.k.vm[idx[-1]]
            self.k.wait_vm(t[1] if t not in tags else t)
    def burst(self, n=1000):
        while n > 0 and self.ready(): self.emit(); n -= 1

class Direct:
    def __init__(self, k, G=None): self.k = k; self.G = G
    def __call__(self, s, tag=None):
        for ln in s.strip("\n").split("\n"):
            ln = ln.strip()
            if not ln: continue
            self.k(ln, tag)
            if self.G and not ln.startswith(";"): self.G.tick(cost_of(ln))
    def wait_vm(self, tag): self.k.wait_vm(tag)
    def wait_lg(self, tag): self.k.wait_lg(tag)
    def atomic(self, fn, cost=2): fn()
    def hold(self, n): pass
    def until(self, key): pass
    def ts(self, name): self.k.ts(name)
    def newlabel(self, p): return self.k.newlabel(p)

class Sched:
    def __init__(self, G, sides): self.G = G; self.sides = [s for s in sides if s is not None]
    def gap(self, budget):
        budget -= self.G.tick(4)
        for sd in self.sides:
            while sd.items and budget > 0:
                c, fn = sd.items[0]
                if c == "hold":
                    if fn <= 0: sd.items.pop(0); continue
                    sd.items[0] = ("hold", fn - 1); break
                if c == "until":
                    if fn in self.G.done: sd.items.pop(0); continue
                    break
                if c > budget and budget < 2: break
                sd.items.pop(0); fn(); budget -= c
    def flush(self, only=None):
        for sd in (only if only is not None else self.sides):
            if sd is None: continue
            for c, fn in sd.items:
                if c not in ("hold", "until"):
                    fn(); self.G.tick(c)
            sd.items = []


def zip_longest_(a, b):
    out = []
    for i in range(max(len(a), len(b))):
        out.append(tuple(x[i] for x in (a, b) if i < len(x)))
    return out
```

```python
import struct, os
EXP = os.environ.get("EXP", "").split(",")
from gen_common import *
from sched import *
def ENV(n, d): return int(os.environ.get(n, d))

TP = 20480
HP = 49152
NL = 27
L_W2 = 49152
L_SCR = L_W2 + 4 * NL * 1024
V_L16 = 7
V_WL = 4
V_NON = 2
V_FLG = 9
V_XFP, V_XFS = 12, 13
V_RDP, V_RDS = 14, 15
V_OUP, V_OUS = 16, 17
V_STW, V_STR = 18, 19
V_PL = 10
V_CS = 20
V_XR = 32
V_ST = 44
V_TMP = 56
V_N = 63
RA, RB, TB, SP = 80, 128, 176, 208
A_Y = 240
A_ONES = 252
LOG2E = 1.4426950408889634
NL2E = hex(struct.unpack("<I", struct.pack("<f", -LOG2E))[0])
PACE = ENV("PACE", 20); PACE2 = ENV("PACE2", 12)
KB = list(range(8, 20)) + list(range(8))
KORD = {(0, 0): KB, (0, 1): KB, (1, 0): list(range(20)), (1, 1): KB}
PGORD = [[0, 1, 2, 3], [2, 3, 0, 1]]

def hq(i): return RA + 4 * i if i < 12 else SP + 4 * (i - 12)

def gen_k2(dbg=False):
    k = K("k2_kernel", 256, 256, lds=160 * 1024, vgpr=256, agpr=256, sgpr=102)
    k.stb = None; k.tl = dbg
    END = "Lk2_end"
    G = Glob(k); D = Direct(k, G); D0 = Direct(k)
    NQ, NY, NS, NX, NN, NT = 80, 208, 104, 220, 120, 132
    NA = 232
    k(f"""
    s_cmp_ge_u32 s2, 256
    s_cbranch_scc1 {END}
    s_load_dwordx2 s[8:9], s[0:1], 0
    s_load_dwordx2 s[24:25], s[0:1], 96
    s_load_dwordx2 s[20:21], s[0:1], 88
    s_load_dwordx2 s[16:17], s[0:1], 80
    v_lshrrev_b32 v1, 6, v0
    s_and_b32 s3, s2, 7                     ; x
    s_lshr_b32 s4, s2, 3                    ; r
    v_readfirstlane_b32 s{S_WAVE}, v1
    s_lshr_b32 s41, s3, 2
    s_lshl_b32 s41, s41, 3
    s_and_b32 s5, s4, 7
    s_add_u32 s41, s41, s5                  ; cl
    s_and_b32 s42, s3, 3
    s_lshl_b32 s42, s42, 2
    s_lshr_b32 s5, s4, 3
    s_add_u32 s42, s42, s5
    s_lshl_b32 s45, s41, 4
    s_add_u32 s45, s45, s42                 ; L = cl*16+i
    s_lshl_b32 s3, s45, 3
    v_and_b32 v{NT}, 7, v0                  ; tk
    v_add_u32 v{NT+1}, s3, v{NT}            ; token
    v_lshrrev_b32 v{NT+2}, 3, v0            ; Gl
    v_lshlrev_b32 v{NT+4}, 3, v{NT+1}             ; token*8
    v_lshl_add_u32 v{NT+5}, v{NT+2}, 15, v{NT+4}  ; y voffset
    v_mul_u32_u24 v{NT+3}, 1280, v{NT+1}
    v_lshl_add_u32 v{NT+3}, v{NT+2}, 4, v{NT+3}   ; q voffset
    s_mov_b32 s26, {WS_SIZE}
    s_mov_b32 s27, 0x20000
    s_mov_b32 s10, {NB}
    s_mov_b32 s11, 0x20000
    s_mov_b32 s22, 256
    s_mov_b32 s23, 0x20000
    s_mov_b32 s3, {WS_Y4}
    s_mov_b32 s4, {WS_Y4 + 16384}
    s_mov_b32 s5, {WS_Y4 + 64*16384}
    s_mov_b32 s6, {WS_Y4 + 65*16384}
    s_mov_b32 s7, {WS_SQ}
    s_waitcnt lgkmcnt(0)
    """)
    k(f"""
    buffer_load_dwordx2 v[{NY}:{NY+1}], v{NT+5}, s[24:27], s3 offen
    buffer_load_dwordx2 v[{NY+2}:{NY+3}], v{NT+5}, s[24:27], s4 offen
    buffer_load_dwordx4 v[{NQ}:{NQ+3}], v{NT+3}, s[8:11], 0 offen
    buffer_load_dwordx2 v[{NS}:{NS+1}], v{NT+4}, s[24:27], s7 offen
    """, tag=("nq", 0))
    k(f"""
    buffer_load_dwordx2 v[{NY+4}:{NY+5}], v{NT+5}, s[24:27], s5 offen
    buffer_load_dwordx2 v[{NY+6}:{NY+7}], v{NT+5}, s[24:27], s6 offen
    buffer_load_dwordx4 v[{NQ+4}:{NQ+7}], v{NT+3}, s[8:11], 0 offen offset:512
    """, tag=("nq", 1))
    k(f"""
    s_cmp_lt_u32 s{S_WAVE}, 2
    s_cselect_b32 s28, 0, 0x70000000
    s_add_u32 s29, s28, {WS_Y4 + 128*16384}
    s_add_u32 s30, s28, {WS_Y4 + 129*16384}
    """)
    k(f"""
    buffer_load_dwordx2 v[{NY+8}:{NY+9}], v{NT+5}, s[24:27], s29 offen
    buffer_load_dwordx2 v[{NY+10}:{NY+11}], v{NT+5}, s[24:27], s30 offen
    buffer_load_dwordx4 v[{NQ+8}:{NQ+11}], v{NT+3}, s[8:11], s28 offen offset:1024
    """, tag=("nq", 2))
    sv = list(k.vm); nonce_publish(k, V_TMP + 20); k.vm = sv
    k.ts("start")
    LN = V_TMP + 8
    k(f"""
    v_and_b32 v{LN}, 63, v0
    s_mov_b32 s{S_SPIN}, {SPIN}
    s_lshl_b32 s46, s42, 2
    s_add_u32 s46, s46, s{S_WAVE}
    s_mul_i32 s46, s46, {60*1024}
    s_add_u32 s46, s46, {WS_W1P}
    v_lshlrev_b32 v{V_L16}, 4, v{LN}
    """)
    k.last_w = None; k.last_h = None; k.last_m = None
    def w_frag(nm, sb, f):
        if k.last_w != (nm, f >> 2): k(f"s_add_u32 s62, s{sb}, {1024*(f & ~3)}")
        k.last_w = (nm, f >> 2)
        k(f"buffer_load_dwordx4 a[{4*f}:{4*f+3}], v{V_L16}, s[24:27], s62 offen offset:{1024*(f%4)}", tag=(nm, f))
    def dma(key, mexpr, sexpr, off, tag, sc):
        if k.last_m != key: k(f"{mexpr}\n{sexpr}")
        k.last_m = key
        k(f"buffer_load_dwordx4 v{V_L16}, s[24:27], s38 offen offset:{off}{sc} lds", tag=tag)
    def tok_dma(X, u):
        s = u // 20; ks = KORD[(0 if X == WS_XN else 1, s)][u % 20]
        dma((X, u >> 2), f"s_add_u32 m0, s49, {((u % 12) & ~3)*1024}", f"s_add_u32 s38, s48, {X + s*4*TP + (ks & ~3)*1024}", 1024 * (u % 4), ("tok", u), " sc1")
    def w2l_dma(f):
        dma(("w2l", f >> 2), f"s_add_u32 m0, s51, {(f & ~3)*1024}", f"s_add_u32 s38, s47, {(f & ~3)*1024}", 1024 * (f % 4), ("w2l", f), "")
    def push_w1(f, cond=None): G.push(("w1", f), lambda: w_frag("w1", 46, f), cond)
    def push_w2(f, cond=None): G.push(("w2", f), lambda: w_frag("w2", 47, f), cond)

    for ks in KORD[(0, 0)]:
        for mt in range(3): push_w1(3 * ks + mt)
    G.burst(ENV("NB0", 8))
    D0(f"""
    s_mov_b32 s55, 0x3f803f80
    v_lshrrev_b32 v{NA}, 4, v{NT+1}
    v_mul_u32_u24 v{NA}, {TP}, v{NA}
    v_and_b32 v{NT+7}, 15, v{NT+1}
    v_lshl_add_u32 v{NA}, v{NT+7}, 4, v{NA}
    v_lshl_add_u32 v{NA}, v{NT+2}, 8, v{NA}
    s_lshl_b32 s5, s{S_WAVE}, 6
    v_lshlrev_b32 v{NT+7}, 3, v{NT}
    v_add_u32 v{NT+7}, {L_SCR}, v{NT+7}
    v_add_u32 v{NT+8}, s5, v{NT+7}
    s_mov_b32 s18, {NB}
    s_mov_b32 s19, 0x20000
    s_lshr_b32 s43, s42, 3                  ; rh
    s_and_b32 s44, s42, 7                   ; ct2
    s_mul_i32 s47, s44, 48
    s_mul_i32 s5, s{S_WAVE}, 12
    s_add_u32 s47, s47, s5
    s_mul_i32 s47, s47, 5120
    s_add_u32 s47, s47, {WS_W2P}
    s_lshl_b32 s37, s41, 3
    s_add_u32 s37, s37, s{S_WAVE}
    s_mul_i32 s48, s37, {TP}
    s_mul_i32 s49, s{S_WAVE}, 12288
    s_mul_i32 s51, s{S_WAVE}, {NL*1024}
    s_add_u32 s51, s51, {L_W2}
    v_add_u32 v{V_WL}, s51, v{V_L16}
    v_lshlrev_b32 v{V_FLG}, {FLS}, v{LN}
    v_and_b32 v{V_N}, 15, v{LN}
    v_lshrrev_b32 v{V_TMP+2}, 4, v{LN}      ; q
    s_lshl_b32 s52, s41, 3
    s_lshl_b32 s5, s43, 1
    s_add_u32 s52, s52, s5
    s_and_b32 s5, s{S_WAVE}, 1
    s_add_u32 s53, s52, s5                  ; T (stream 0)
    s_lshr_b32 s54, s{S_WAVE}, 1            ; P
    s_mul_i32 s5, s44, 10
    s_lshl_b32 s6, s54, 2
    s_add_u32 s6, s6, s5
    v_add_u32 v{V_TMP}, s6, v{V_TMP+2}
    s_mul_i32 s7, s53, {TP}
    v_lshl_add_u32 v{V_TMP+3}, v{V_N}, 4, s7
    v_lshl_add_u32 v{V_XFP}, v{V_TMP}, 8, v{V_TMP+3}
    s_lshl_b32 s7, s53, 4
    v_add_u32 v{V_TMP+1}, s7, v{V_N}        ; token
    v_mul_u32_u24 v{V_OUS}, 1280, v{V_TMP+1}
    v_lshl_add_u32 v{V_OUP}, v{V_TMP}, 4, v{V_OUS}
    v_lshlrev_b32 v{V_TMP+1}, 3, v{V_TMP+1}               ; token*8
    v_lshl_add_u32 v{V_TMP+4}, v{V_TMP}, 15, v{V_TMP+1}
    s_lshl_b32 s5, s5, 1
    s_add_u32 s5, s5, 16
    v_add_u32 v{V_TMP}, s5, v{V_TMP+2}
    v_lshl_add_u32 v{V_TMP+5}, v{V_TMP}, 14, v{V_TMP+1}
    v_lshl_add_u32 v{V_OUS}, v{V_TMP}, 3, v{V_OUS}
    v_lshrrev_b32 v{V_TMP+6}, 1, v{V_TMP}
    v_lshl_add_u32 v{V_XFS}, v{V_TMP+6}, 8, v{V_TMP+3}
    v_and_b32 v{V_TMP+6}, 1, v{V_TMP}
    v_lshl_add_u32 v{V_XFS}, v{V_TMP+6}, 3, v{V_XFS}
    """)
    k(f"buffer_load_dwordx2 v[{V_NON}:{V_NON+1}], off, s[{S_DBG}:{S_DBG+3}], 0 sc1", tag="nonce")
    def late_setup():
        D0(f"""
        s_and_b32 s5, s{S_WAVE}, 1
        s_mul_i32 s5, s5, 5120
        s_lshl_b32 s6, s54, 11
        s_add_u32 s6, s6, s5
        v_add_u32 v{V_RDP}, s6, v{V_L16}
        s_add_u32 s5, s5, 4096
        v_add_u32 v{V_RDS}, s5, v{V_L16}
        s_lshl_b32 s5, s44, 1
        s_add_u32 s5, s5, s54
        s_lshl_b32 s5, s5, 8
        s_lshl_b32 s39, s53, 12
        s_add_u32 s5, s5, s39
        v_lshlrev_b32 v{V_TMP}, 4, v{V_N}
        v_add_u32 v{V_STW}, s5, v{V_TMP}
        v_lshl_add_u32 v{V_STR}, v{V_TMP+2}, 10, v{V_TMP}
        v_mov_b32 v{V_TMP}, s55
        v_accvgpr_write_b32 a{A_ONES}, v{V_TMP}
        v_accvgpr_write_b32 a{A_ONES+1}, v{V_TMP}
        v_accvgpr_write_b32 a{A_ONES+2}, v{V_TMP}
        v_accvgpr_write_b32 a{A_ONES+3}, v{V_TMP}
        s_mul_i32 s36, s41, {8*HP}
        s_mul_i32 s5, s42, 3072
        s_add_u32 s36, s36, s5
        s_mul_i32 s5, s{S_WAVE}, 768
        s_add_u32 s36, s36, s5
        s_mul_i32 s35, s52, {HP}
        s_mul_i32 s5, s{S_WAVE}, 12288
        s_add_u32 s35, s35, s5
        s_mov_b32 s64, -1
        s_mov_b32 s65, 0xffff
        s_lshl_b32 s66, s45, 10
        s_lshl_b32 s5, s{S_WAVE}, 8
        s_add_u32 s66, s66, s5
        s_lshl_b32 s67, s41, 14
        s_lshl_b32 s5, s{S_WAVE}, 12
        s_add_u32 s67, s67, s5
        s_cmp_eq_u32 s54, 0
        s_cselect_b32 s34, 1.0, 0
        """)
    def res_load(s, X, kind, r):
        k(f"s_mov_b32 s63, {X + s*4*TP}")
        k(f"buffer_load_dwordx4 {kind}[{r}:{r+3}], v{V_XFP}, s[24:27], s63 offen sc1", tag=("res", s))
        k(f"buffer_load_dwordx2 {kind}[{r+4}:{r+5}], v{V_XFS}, s[24:27], s63 offen sc1", tag=("res", s))
    def x1_math(e, q, y, S, x, t, pk=True):
        unpack_lo(e, t, q); unpack_hi(e, t + 1, q); unpack_lo(e, t + 2, y); unpack_hi(e, t + 3, y)
        if pk:
            e(f"v_pk_fma_f32 v[{t+4}:{t+5}], v[{t}:{t+1}], v[{S}:{S+1}], v[{S}:{S+1}] op_sel:[0,1,0] op_sel_hi:[1,1,0] neg_lo:[0,0,1] neg_hi:[0,0,1]")
            e(f"v_pk_fma_f32 v[{t+4}:{t+5}], v[{t+4}:{t+5}], v[{t+2}:{t+3}], v[{t}:{t+1}]")
        else:
            for i in range(2): e(f"v_fma_f32 v{t+4+i}, v{t+i}, v{S+1}, -v{S}")
            for i in range(2): e(f"v_fma_f32 v{t+4+i}, v{t+4+i}, v{t+2+i}, v{t+i}")
        e(f"v_cvt_pk_bf16_f32 v{x}, v{t+4}, v{t+5}")
    def xor_reduce(e, regs, t):
        for op in ("v_permlane16_swap_b32", "v_permlane32_swap_b32"):
            for i, r in enumerate(regs): e(f"v_mov_b32 v{t+i}, v{r}")
            for i, r in enumerate(regs): e(f"{op} v{r}, v{t+i}")
            for i, r in enumerate(regs): e(f"v_add_f32 v{r}, v{r}, v{t+i}")

    def flag_off(phase): return WS_FL + ((2 + phase) * 256 << FLS)
    def flag_store(sreg):
        k(f"s_mov_b64 exec, 1\nbuffer_store_dwordx2 v[{V_NON}:{V_NON+1}], off, s[24:27], s{sreg} sc1\ns_mov_b64 exec, -1")
    def flag_after_barrier(phase):
        l = k.newlabel("Lsg")
        k(f"s_cmp_lg_u32 s{S_WAVE}, 0\ns_cbranch_scc1 {l}")
        k(f"s_lshl_b32 s3, s45, {FLS}\ns_add_u32 s3, s3, {flag_off(phase)}")
        sv = list(k.vm); flag_store(3); k.vm = sv
        k(f"{l}:")
        k.ts(f"sig{phase}")
    def signal(e, phase, tag):
        e.wait_vm(tag)
        e.atomic(lambda: (k("s_barrier"), flag_after_barrier(phase)))
    def poll_issue(mkaddr, tag):
        k(f"{mkaddr}\ns_mov_b64 exec, 0xffff")
        k(f"buffer_load_dwordx2 v[{V_PL}:{V_PL+1}], v{V_FLG}, s[24:27], s33 offen sc1", tag=tag)
        k("s_mov_b64 exec, -1")
    def poll_check(tag, name):
        l, l2 = k.newlabel("Lpr"), k.newlabel("Lpo")
        k.ts(name + "_in")
        k.wait_vm(tag)
        sv = list(k.vm)
        k(f"""
        s_mov_b64 exec, 0xffff
        s_branch {l2}
        {l}:
        s_sleep {ENV("SLP", 2)}
        buffer_load_dwordx2 v[{V_PL}:{V_PL+1}], v{V_FLG}, s[24:27], s33 offen sc1
        s_waitcnt vmcnt(0)
        s_sub_u32 s{S_SPIN}, s{S_SPIN}, 1
        s_cbranch_scc1 {END}
        {l2}:
        v_cmp_ne_u64 vcc, v[{V_NON}:{V_NON+1}], v[{V_PL}:{V_PL+1}]
        s_cbranch_vccnz {l}
        s_mov_b64 exec, -1
        """)
        k.vm = sv
        k.ts(name + "_ok")
    def x_issue(phase): poll_issue(f"s_lshl_b32 s33, s41, {4+FLS}\ns_add_u32 s33, s33, {flag_off(phase)}", ("xp", phase))
    def x_check(phase): poll_check(("xp", phase), f"xp{phase}")
    def h_issue(ph): poll_issue(f"s_add_u32 s33, s67, {WS_FH + ph*262144}", ("hp", ph))
    def h_chk(ph): poll_check(("hp", ph), f"hp{ph}")
    def h_flag(ph):
        k.wait_vm(("hst", ph))
        k(f"s_add_u32 s3, s66, {WS_FH + ph*262144}"); flag_store(3)

    t = NT + 10
    S1, S2 = NT + 22, NT + 23
    k.ts("n_in")
    G.pace = ENV("PACEN", 16)
    for rho in range(3):
        k.wait_vm(("nq", rho))
        for d in range(4):
            x1_math(D, NQ + 4 * rho + d, NY + 4 * rho + d, NS, NX + 4 * rho + d, t + 6 * (d & 1))
        for d in range(4):
            x = NX + 4 * rho + d; o = S1 + 2 * (d & 1); first = rho == 0 and d < 2
            D(f"v_dot2_f32_bf16 v{o}, v{x}, s55, " + ("0" if first else f"v{o}"))
            D(f"v_dot2_f32_bf16 v{o+1}, v{x}, v{x}, " + ("0" if first else f"v{o+1}"))
    U = 160
    for i in range(2): unpack_lo(D0, U + 2 * i, NX + i); unpack_hi(D0, U + 2 * i + 1, NX + i)
    D0(f"v_pk_add_f32 v[{S1}:{S2}], v[{S1}:{S2}], v[{S1+2}:{S1+3}]")
    for r in (S1, S2): D0(f"v_add_f32_dpp v{r}, v{r}, v{r} row_ror:8 row_mask:0xf bank_mask:0xf")
    xor_reduce(D0, [S1, S2], t)
    k(f"ds_write_b64 v{NT+8}, v[{S1}:{S2}]")
    for i in range(2, 7): unpack_lo(D0, U + 2 * i, NX + i); unpack_hi(D0, U + 2 * i + 1, NX + i)
    k("s_waitcnt lgkmcnt(0)\ns_barrier")
    for w in range(4): k(f"ds_read_b64 v[{t+2*w}:{t+2*w+1}], v{NT+7} offset:{64*w}")
    for i in range(7, 12): unpack_lo(D0, U + 2 * i, NX + i); unpack_hi(D0, U + 2 * i + 1, NX + i)
    k(f"""
    s_waitcnt lgkmcnt(0)
    v_pk_add_f32 v[{t}:{t+1}], v[{t}:{t+1}], v[{t+2}:{t+3}]
    v_pk_add_f32 v[{t+4}:{t+5}], v[{t+4}:{t+5}], v[{t+6}:{t+7}]
    v_pk_add_f32 v[{S1}:{S2}], v[{t}:{t+1}], v[{t+4}:{t+5}]
    """)
    ln_scalars(k, S1, S2, t)
    k(f"v_mul_f32 v{S1}, v{S1}, v{S2}")
    for rho in range(3):
        for d in range(4):
            u = U + 2 * (4 * rho + d)
            D0(f"v_pk_fma_f32 v[{u}:{u+1}], v[{u}:{u+1}], v[{S1}:{S2}], v[{S1}:{S2}] op_sel:[0,1,0] op_sel_hi:[1,1,0] neg_lo:[0,0,1] neg_hi:[0,0,1]")
        for d in range(4):
            u = U + 2 * (4 * rho + d)
            D0(f"v_cvt_pk_bf16_f32 v{NN+4*rho+d}, v{u}, v{u+1}")
        D0(f"s_add_u32 s3, {'s28' if rho == 2 else '0'}, {WS_XN + 8192*rho}")
        D0(f"buffer_store_dwordx4 v[{NN+4*rho}:{NN+4*rho+3}], v{NA}, s[24:27], s3 offen sc1", tag="xn")
    k.ts("n_out")
    G.burst(ENV("NB1", 8))
    late_setup()
    lg = k.newlabel("Lng")
    k.wait_vm("nonce")
    k(f"v_readfirstlane_b32 s{S_NONCE}, v{V_NON}\ns_cmp_lg_u32 s{S_NONCE}, 0\ns_cbranch_scc1 {lg}")
    sv = list(k.vm); nonce_get(k, V_NON, END); k.vm = sv
    k(f"{lg}:")
    def colsum(ks, first):
        return [f"v_mfma_f32_16x16x32_bf16 v[{V_CS+4*mt}:{V_CS+4*mt+3}], a[{12*ks+4*mt}:{12*ks+4*mt+3}], a[{A_ONES}:{A_ONES+3}], " + ("0" if first else f"v[{V_CS+4*mt}:{V_CS+4*mt+3}]") for mt in range(3)]

    def cs_now(kss):
        for ks in kss:
            G.need([("w1", 3 * ks + x) for x in range(3)])
            for m in colsum(ks, ks == 8): k(m)
    cs_now(range(8, 13))
    signal(D0, 4, "xn")
    G.burst(ENV("NB2", 8))
    cs_now(range(13, 16))
    def frag_reads(u):
        return [f"ds_read_b128 v[{TB+16*(u&1)+4*tt}:{TB+16*(u&1)+4*tt+3}], v{V_L16} offset:{tt*12288 + (u % 12)*1024}" for tt in range(4)]
    def push_toks(X, layer, c0, c1, merge=True):
        rest = G.bg; G.bg = []
        for u in range(4 * c0, 4 * c1):
            c = u >> 2
            G.push(("tok", u), (lambda u=u: tok_dma(X, u)), ("bar", layer, c - 2) if c >= 3 else None)
        def key(t):
            tg = t[0]
            if tg[0] == "tok": return 4 * (tg[1] >> 2) - 1 - ENV("TKL", 3) + 0.01 * tg[1]
            if tg[0] == "w1": return KORD[(layer, 0)].index(tg[1] // 3) + 0.1 * (tg[1] % 3)
            return 1000
        G.bg = sorted(G.bg + rest, key=key)
    def tok_sync(layer, c):
        G.need([("tok", 4 * c + x) for x in range(4)])
        k("s_barrier"); G.mark(("bar", layer, c))

    def g1(s, layer, sides, cs=()):
        acc = RA if s == 0 else RB
        sc = Sched(G, sides)
        k.ts(f"g1_{s}_in")
        if s == 0:
            tok_sync(layer, 0)
            for rd in frag_reads(0): k(rd, tag=("fr", 0))
        for j in range(20):
            u = 20 * s + j; ks = KORD[(layer, s)][j]
            fine = "FINE" in EXP and layer == ENV("FL", 0)
            if fine and j % 2 == 1: k.ts(f"u{u}")
            G.need([("w1", 3 * ks + x) for x in range(3)])
            k.wait_lg(("fr", u))
            if (u + 1) % 4 == 0 and u + 1 < 40:
                if layer == 1 and u == 19 and "tokB" not in G.done: sc.flush(list(reversed(sides)))
                tok_sync(layer, (u + 1) >> 2)
                if fine: k.ts(f"b{u}")
            nxt = frag_reads(u + 1) if u + 1 < 40 else []
            mf = []
            for tt in range(4):
                for mt in range(3):
                    a = acc + 12 * tt + 4 * mt; b = TB + 16 * (u & 1) + 4 * tt
                    mf.append(f"v_mfma_f32_16x16x32_bf16 v[{a}:{a+3}], a[{12*ks+4*mt}:{12*ks+4*mt+3}], v[{b}:{b+3}], " + ("0" if j == 0 else f"v[{a}:{a+3}]"))
            if ks in cs: mf += colsum(ks, ks == min(cs))
            for n, m in enumerate(mf):
                k(m)
                bud = 2
                if nxt and n % 2 == 0:
                    k(nxt.pop(0), tag=("fr", u + 1)); k(nxt.pop(0), tag=("fr", u + 1)); bud -= 2
                if n == len(mf) - 1: G.mark(("ks", layer, s, ks)); G.mark(("st", layer, s, j)); bud -= 1
                sc.gap(bud)
        k.ts(f"g1_{s}_loop")
        sc.flush()
        if s == 1: k.forget(lambda t: isinstance(t, tuple) and (t[0] in ("fr", "tok") or (t[0] == "w1" and t[1] >= NL)))

    def poll16(e, sreg, mkaddr, tag, hold, name, d):
        r = V_TMP
        def loads(tg=None):
            for i in range(4): k(f"buffer_load_dwordx4 v[{r+4*i}:{r+4*i+3}], v{V_STR}, s[24:27], s{sreg} offen offset:{256*i} sc1", tag=tg)
        def poll():
            l, l2 = k.newlabel("Lst"), k.newlabel("Lso")
            k.ts(f"{name}_in")
            k.wait_vm(tag)
            sv = list(k.vm)
            k(f"s_branch {l2}\n{l}:\ns_sleep 1")
            loads()
            k(f"""
            s_waitcnt vmcnt(0)
            s_sub_u32 s{S_SPIN}, s{S_SPIN}, 1
            s_cbranch_scc1 {END}
            {l2}:
            v_cmp_ne_u64 s[68:69], v[{V_NON}:{V_NON+1}], v[{r+2}:{r+3}]
            v_cmp_ne_u64 s[70:71], v[{V_NON}:{V_NON+1}], v[{r+6}:{r+7}]
            v_cmp_ne_u64 s[72:73], v[{V_NON}:{V_NON+1}], v[{r+10}:{r+11}]
            v_cmp_ne_u64 vcc, v[{V_NON}:{V_NON+1}], v[{r+14}:{r+15}]
            s_or_b64 s[68:69], s[68:69], s[70:71]
            s_or_b64 vcc, vcc, s[72:73]
            s_or_b64 vcc, vcc, s[68:69]
            s_cbranch_vccnz {l}
            """)
            k.vm = sv
            k.ts(f"{name}_got")
        e.atomic(lambda: (k(mkaddr), loads(tag)))
        e.hold(hold)
        e.atomic(poll)
        e(f"""
        v_add_f32 v{r}, v{r}, v{r+4}
        v_add_f32 v{r+1}, v{r+1}, v{r+5}
        v_add_f32 v{r+8}, v{r+8}, v{r+12}
        v_add_f32 v{r+9}, v{r+9}, v{r+13}
        v_add_f32 v{d}, v{r}, v{r+8}
        v_add_f32 v{d+1}, v{r+1}, v{r+9}
        """)
    def stats_x3(e, s):
        t = V_TMP + 16
        S1, S2 = t, t + 1
        poll16(e, 31, f"s_lshl_b32 s31, s37, 12\ns_add_u32 s31, s31, {WS_ST2 + s*4*4096}", ("st2", s), 40, f"st2_{s}", S1)
        xor_reduce(e, [S1, S2], t + 2)
        ln_scalars(e, S1, S2, t + 2)
        e(f"v_bfe_u32 v{t+3}, v{V_L16}, 1, 7\ns_lshl_b32 s7, s{S_WAVE}, 7\nv_add_u32 v{t+3}, {L_SCR + 1024*s}, v{t+3}\nv_add_u32 v{t+2}, s7, v{t+3}")
        e(f"ds_write_b64 v{t+2}, v[{S1}:{S2}]", tag=("stw", s))
        e.hold(2)
        e.wait_lg(("stw", s))
        e("s_barrier")
        for tt in range(4): e(f"ds_read_b64 v[{V_TMP+2*tt}:{V_TMP+2*tt+1}], v{t+3} offset:{128*tt}", tag=("str", s))
        e.hold(3)
        e.wait_lg(("str", s))
        for tt in range(4):
            m, rs = V_TMP + 2 * tt, V_TMP + 2 * tt + 1
            d = V_ST + 3 * tt
            e(f"v_sub_f32 v{d}, 0, v{m}\nv_mul_f32 v{d+1}, {NL2E}, v{rs}\nv_mul_f32 v{d+2}, v{rs}, v{rs}\nv_rcp_f32 v{d+2}, v{d+2}")

    def bc(r): return f"v[{r & ~1}:{(r & ~1) + 1}]", r & 1
    def epi(e, s, H, layer):
        acc = RA if s == 0 else RB
        e.ts(f"epi_{s}_in")
        if layer == 0: e(f"v_mov_b32 v{V_ST}, {NL2E}")
        P, Q, R = V_TMP + 20, V_TMP + 21, V_TMP + 22
        for half in range(2):
            A = [acc + 24 * half + 4 * x for x in range(6)]
            T = [V_TMP + 2 * x for x in range(6)]
            NM = [V_ST + 3 * (2 * half + x // 3) for x in range(6)]
            if layer == 0:
                for a, t in zip(A, T): e(f"v_pk_mul_f32 v[{t}:{t+1}], v[{a}:{a+1}], v[{V_ST}:{V_ST+1}] op_sel_hi:[1,0]")
            else:
                for h in (0, 2):
                    for x, a in enumerate(A):
                        o1, b1 = bc(NM[x]); cs = V_CS + 4 * (x % 3)
                        e(f"v_pk_fma_f32 v[{a+h}:{a+h+1}], {o1}, v[{cs+h}:{cs+h+1}], v[{a+h}:{a+h+1}] op_sel:[{b1},0,0] op_sel_hi:[{b1},1,1]")
                    if h == 0:
                        for x, (a, t) in enumerate(zip(A, T)):
                            o2, b2 = bc(NM[x] + 1)
                            e(f"v_pk_mul_f32 v[{t}:{t+1}], v[{a}:{a+1}], {o2} op_sel:[0,{b2}] op_sel_hi:[1,{b2}]")
            for t in T: e(f"v_exp_f32 v{t}, v{t}\nv_exp_f32 v{t+1}, v{t+1}")
            for a in A: e(f"v_pk_mul_f32 v[{a}:{a+1}], v[{a}:{a+1}], v[{a+2}:{a+3}]")
            for x, t in enumerate(T):
                if layer == 0: e(f"v_pk_add_f32 v[{t}:{t+1}], v[{t}:{t+1}], 1.0 op_sel_hi:[1,0]")
                else:
                    o3, b3 = bc(NM[x] + 2)
                    e(f"v_pk_fma_f32 v[{t}:{t+1}], v[{t}:{t+1}], {o3}, {o3} op_sel:[0,{b3},{b3}] op_sel_hi:[1,{b3},{b3}]")
            for t in T: e(f"v_rcp_f32 v{t}, v{t}\nv_rcp_f32 v{t+1}, v{t+1}")
            for a, t in zip(A, T): e(f"v_pk_mul_f32 v[{a}:{a+1}], v[{a}:{a+1}], v[{t}:{t+1}]")
            for t2 in range(2):
                B = A[3 * t2:3 * t2 + 3]; o = V_TMP + 12 + 4 * t2
                e(f"v_cvt_pk_bf16_f32 v{P}, v{B[0]}, v{B[0]+1}\nv_cvt_pk_bf16_f32 v{Q}, v{B[1]}, v{B[1]+1}")
                e(f"v_cvt_pk_bf16_f32 v{R}, v{B[2]}, v{B[2]+1}\nv_cvt_pk_bf16_f32 v{o+3}, v{B[2]}, v{B[2]+1}")
                e(f"v_cvt_pk_bf16_f32 v{o}, v{B[0]}, v{B[0]+1}")
                e(f"v_permlane16_swap_b32 v{P}, v{Q}")
                e(f"v_cvt_pk_bf16_f32 v{o+1}, v{B[1]}, v{B[1]+1}")
                e(f"v_permlane16_swap_b32 v{R}, v{o+3}")
                e(f"v_cvt_pk_bf16_f32 v{o+2}, v{B[2]}, v{B[2]+1}")
                e(f"s_add_u32 s6, s36, {H + (4*s + 2*half + t2)*HP}")
                e(f"v_permlane32_swap_b32 v{Q}, v{o+3}")
                e.atomic(lambda o=o: k(f"s_mov_b64 exec, s[64:65]\nbuffer_store_dwordx4 v[{o}:{o+3}], v{V_L16}, s[24:27], s6 offen sc1\ns_mov_b64 exec, -1", tag=("hst", 2 * layer + s)))
        e.ts(f"epi_{s}_out")

    def h_load(s, H, i):
        pg, t2, g = PGORD[s][i // 6], (i // 3) & 1, i % 3
        if k.last_h != (H, s, i // 3): k(f"s_add_u32 s32, s35, {H + (4*s + t2)*HP + pg*3072}")
        k.last_h = (H, s, i // 3)
        r = hq(i)
        k(f"buffer_load_dwordx4 v[{r}:{r+3}], v{V_L16}, s[24:27], s32 offen offset:{1024*g} sc1", tag=("h", s, i))
    def push_h(s, H, layer):
        for i in range(24):
            G.push(("h", s, i), (lambda s=s, i=i: h_load(s, H, i)), ("hfree", layer, i // 6) if s == 1 else None)

    def g2(s, H, layer, sides, at=None):
        at = at or {}
        acc = RB
        sc = Sched(G, sides)
        seq = [(j, g, mt) for j in range(4) for g in range(3) for mt in range(5)]
        fr = [5 * (3 * PGORD[s][j] + g) + mt for (j, g, mt) in seq]
        lseq = [f for f in fr if f < NL]
        lq = {f: TB + 4 * (x % 8) for x, f in enumerate(lseq)}
        issued = [0]
        def lread():
            f = lseq[issued[0]]; issued[0] += 1
            k(f"ds_read_b128 v[{lq[f]}:{lq[f]+3}], v{V_WL} offset:{1024*f}", tag=("wl", f))
        if layer == 0 and s == 0: G.need([("w2l", f) for f in range(NL)])
        for _ in range(6): lread()
        n = 0; used = 0
        for x, (j, g, mt) in enumerate(seq):
            f = fr[x]
            if mt == 0: G.need([("h", s, 6 * j + 3 * t2 + g) for t2 in range(2)])
            if x == 0: k.ts(f"g2_{s}_go")
            if f < NL: k.wait_lg(("wl", f)); W = f"v[{lq[f]}:{lq[f]+3}]"
            else: G.need(("w2", f)); W = f"a[{4*f}:{4*f+3}]"
            for t2 in range(2):
                a = acc + 20 * t2 + 4 * mt; b = hq(6 * j + 3 * t2 + g)
                k(f"v_mfma_f32_16x16x32_bf16 v[{a}:{a+3}], {W}, v[{b}:{b+3}], " + ("0" if x < 5 else f"v[{a}:{a+3}]"))
                bud = 2
                if t2 == 0 and f < NL and issued[0] < len(lseq): lread(); bud -= 1
                if t2 == 1:
                    if f < NL: bud -= 1
                    G.mark(("wf", layer, s, f))
                    if mt == 4 and g == 2 and s == 0: G.mark(("hfree", layer, j))
                n += 1
                if n in at: at[n]()
                else: sc.gap(bud)
        k.ts(f"g2_{s}_loop")
        sc.flush()
        k.forget(lambda t: isinstance(t, tuple) and ((t[0] == "h" and t[1] == s) or t[0] == "wl" or (t[0] == "w2" and s == 1)))

    def red(e, s, at_barrier=None):
        R = RB
        e(f"s_mul_i32 s3, s{S_WAVE}, 10240\nv_add_u32 v{V_TMP+16}, s3, v{V_L16}")
        for t in range(10): e(f"ds_write_b128 v{V_TMP+16}, v[{R+4*t}:{R+4*t+3}] offset:{1024*t}", tag=("rw", s))
        assert not any(x[0][0] in ("rx", "ry") for x in G.bg)
        e.wait_vm(("res", 1))
        for j in range(3):
            xr = V_XR + 6 * s + 2 * j
            for i in range(4): unpack(e, V_TMP + 4 * j + i, xr + (i >> 1), i & 1)
        e.wait_lg(("rw", s))
        if at_barrier: e.wait_vm(at_barrier[1])
        e("s_barrier")
        for j in range(3):
            for wp in range(4):
                r = R + 16 * j + 4 * wp
                e(f"ds_read_b128 v[{r}:{r+3}], v{V_RDP if j < 2 else V_RDS} offset:{10240*wp + (1024*j if j < 2 else 0)}", tag=("rd", s, j))
        if at_barrier: flag_after_barrier(at_barrier[0])
        def add4(d, a, b):
            e(f"v_pk_add_f32 v[{d}:{d+1}], v[{a}:{a+1}], v[{b}:{b+1}]\nv_pk_add_f32 v[{d+2}:{d+3}], v[{a+2}:{a+3}], v[{b+2}:{b+3}]")
        for j in range(3):
            r = R + 16 * j
            e.wait_lg(("rd", s, j))
            add4(r, r, r + 4); add4(r + 8, r + 8, r + 12)
        for j in range(3): add4(R + 16 * j, R + 16 * j, R + 16 * j + 8)
        for j in range(3):
            r = R + 16 * j
            e(f"v_cvt_pk_bf16_f32 v{r+4}, v{r}, v{r+1}\nv_cvt_pk_bf16_f32 v{r+5}, v{r+2}, v{r+3}")
        for j in range(3):
            r = R + 16 * j
            for i in range(4): unpack(e, r + i, r + 4 + (i >> 1), i & 1)
        for j in range(3): add4(R + 16 * j, R + 16 * j, V_TMP + 4 * j)
        for j in range(3):
            r = R + 16 * j; xr = V_XR + 6 * s + 2 * j
            e(f"v_cvt_pk_bf16_f32 v{xr}, v{r}, v{r+1}\nv_cvt_pk_bf16_f32 v{xr+1}, v{r+2}, v{r+3}")
        e.ts(f"red{s}")

    def part_stats(e, s, ST):
        S1, S2 = V_TMP + 16, V_TMP + 17
        a = V_TMP + 18; b = V_TMP + 20
        xr = V_XR + 6 * s
        for d in range(2):
            for o, x in ((S1, xr + d), (a, xr + 2 + d), (b, xr + 4 + d)):
                e(f"v_dot2_f32_bf16 v{o}, v{x}, s55, " + ("0" if d == 0 else f"v{o}"))
                e(f"v_dot2_f32_bf16 v{o+1}, v{x}, v{x}, " + ("0" if d == 0 else f"v{o+1}"))
        e(f"v_add_f32 v{S1}, v{S1}, v{a}\nv_add_f32 v{S2}, v{S2}, v{a+1}")
        e(f"v_fma_f32 v{S1}, v{b}, s34, v{S1}\nv_fma_f32 v{S2}, v{b+1}, s34, v{S2}")
        xor_reduce(e, [S1, S2], V_TMP + 20)
        e(f"v_mov_b32 v{S1+2}, v{V_NON}\nv_mov_b32 v{S1+3}, v{V_NON+1}")
        def st():
            k(f"s_mov_b32 s7, {ST + s*4*4096}\ns_mov_b64 exec, 0xffff")
            k(f"buffer_store_dwordx4 v[{S1}:{S1+3}], v{V_STW}, s[24:27], s7 offen sc1")
            k("s_mov_b64 exec, -1")
        e.atomic(st)

    def mid2(e, s, hold=30, pk=False, ps=True):
        t = V_TMP
        poll16(e, 31, f"s_add_u32 s31, s39, {WS_ST + s*4*4096}", ("stp", s), hold, f"mid2_{s}", t)
        xor_reduce(e, [t, t + 1], t + 2)
        ln_scalars(e, t, t + 1, t + 2)
        e(f"v_mul_f32 v{t}, v{t}, v{t+1}\ns_mov_b32 s30, {WS_X3 + s*4*TP}")
        xr = V_XR + 6 * s
        for d in range(6):
            e(f"v_accvgpr_read_b32 v{t+2+(d&1)}, a{A_Y+6*s+d}")
            x1_math(e, xr + d, t + 2 + (d & 1), t, xr + d, t + 4 + 6 * (d & 1), pk)
            if d == 3: e(f"buffer_store_dwordx4 v[{xr}:{xr+3}], v{V_XFP}, s[24:27], s30 offen sc1", tag=("x3", s))
        e(f"buffer_store_dwordx2 v[{xr+4}:{xr+5}], v{V_XFS}, s[24:27], s30 offen sc1", tag=("x3", s))
        e.ts(f"x3_{s}")
        if ps: part_stats(e, s, WS_ST2)

    def out_store(e, s):
        xr = V_XR + 6 * s
        e(f"""
        s_mov_b32 s3, {s*64*1280}
        buffer_store_dwordx4 v[{xr}:{xr+3}], v{V_OUP}, s[16:19], s3 offen
        buffer_store_dwordx2 v[{xr+4}:{xr+5}], v{V_OUS}, s[16:19], s3 offen
        """)

    x_issue(4)
    G.burst(ENV("NB3", 8))
    x_check(4)
    push_toks(WS_XN, 0, 0, 10)
    G.burst(ENV("NB4", 8))
    cs_now(range(16, 20))
    for f in range(NL): G.push(("w2l", f), lambda f=f: w2l_dma(f))
    G.pace = PACE
    for layer in range(2):
        H = WS_H1 if layer == 0 else WS_H2
        sa = Rec(k)
        if layer == 1:
            sa.until(("st", 1, 0, 1))
            signal(sa, 1, ("x3", 1))
            sa.atomic(lambda: G.mark("sig1"), 0)
            stats_x3(sa, 0)
            sx = Rec(k)
            sx.until("sig1"); sx.hold(ENV("XIH", 36)); sx.atomic(lambda: x_issue(1))
            sx.hold(30); sx.atomic(lambda: (x_check(1), push_toks(WS_X3, 1, 5, 10), G.burst(4)))
            sx.atomic(lambda: G.mark("tokB"), 0)
            g1(0, 1, [sx, sa])
        else:
            sa.until(("st", 0, 0, ENV("XYS", 4)))
            for rho in range(3):
                for X, r in ((WS_X1, NX), (WS_YF, NY)):
                    sa.atomic(lambda rho=rho, X=X, r=r: k(f"s_add_u32 s3, {'s28' if rho == 2 else '0'}, {X + 8192*rho}\nbuffer_store_dwordx4 v[{r+4*rho}:{r+4*rho+3}], v{NA}, s[24:27], s3 offen sc1"))
                    sa.hold(16)
            g1(0, 0, [sa])
        epi(D, 0, H, layer)
        sp = Rec(k); sq = Rec(k)
        sp.until(("st", layer, 1, 2)); sp.atomic(lambda: h_flag(2 * layer))
        sp.until(("st", layer, 1, 6)); sp.atomic(lambda: h_issue(2 * layer))
        sp.until(("st", layer, 1, 9))
        if layer == 1: stats_x3(sq, 1)
        def prb_a_chk():
            h_chk(2 * layer)
            rest = G.bg; G.bg = []
            push_h(0, H, layer)
            items = [((t[0][1] / 5.0 if t[0][0] == "w2" else -100), t) for t in rest] + [(3 * (t[0][2] // 6) - 1 + 0.01 * t[0][2], t) for t in G.bg]
            items.sort(key=lambda x: x[0])
            G.bg = [t for _, t in items]
        sp.atomic(prb_a_chk)
        for f in range(NL, 60): push_w2(f, ("ks", layer, 1, (4 * f + 3) // 12))
        g1(1, layer, [sp, sq])
        G.pace = ENV("PACEE", 12)
        epi(D, 1, H, layer)
        G.pace = PACE2
        k("s_barrier")
        if layer == 0:
            for s_ in range(2):
                G.push(("rx", s_), lambda s_=s_: res_load(s_, WS_X1, "v", V_XR + 6 * s_))
                G.push(("ry", s_), lambda s_=s_: res_load(s_, WS_YF, "a", A_Y + 6 * s_))
        def prb_b_chk():
            h_chk(2 * layer + 1); push_h(1, H, layer); G.burst(ENV("NB5", 6))
        g2(0, H, layer, [], {ENV("HF", 30): lambda: h_flag(2 * layer + 1), ENV("HI", 75): lambda: h_issue(2 * layer + 1), ENV("HC", 110): prb_b_chk})
        red(D, 0)
        if layer == 0:
            part_stats(D, 0, WS_ST)
            sm = Rec(k); mid2(sm, 0, 0, pk=True, ps=False)
            first = sm.items.pop(0)[1]
            g2(1, H, layer, [], {ENV("MI", 45): first, ENV("MC", 80): lambda: Sched(G, [sm]).flush(), ENV("MS", 118): lambda: signal(D0, 0, ("x3", 0))})
            G.pace = PACE
            red(D, 1)
            x_issue(0)
            part_stats(D, 1, WS_ST)
            part_stats(D, 0, WS_ST2)
            for ks in range(0, ENV("CSA", 2)):
                for m in colsum(ks, False): k(m)
            x_check(0)
            k("s_barrier")
            push_toks(WS_X3, 1, 0, 5)
            G.burst(ENV("NB6", 4))
            carry = Rec(k); mid2(carry, 1, 0, pk=True, ps=False)
            carry.items.pop(0)[1]()
            G.burst(ENV("NB7", 8))
            for ks in range(ENV("CSA", 2), 8):
                for m in colsum(ks, False): k(m)
            Sched(Glob(k), [carry]).flush()
            for f in range(NL, 60): push_w1(f)
            push_toks(WS_X3, 1, 0, 0)
            G.burst(ENV("NB8", 4))
            part_stats(D, 1, WS_ST2)
        else:
            out_store(D, 0)
            sm = Rec(k); sm.hold(20); sm("s_barrier")
            g2(1, H, layer, [sm])
            red(D, 1)
            out_store(D, 1)
    assert not G.bg, G.bg
    if dbg:
        k.ts_flush(24, WS_DBG + 65536)
        open("ts_names.txt", "w").write(" ".join(k.tsn))
    k(f"{END}:")
    return k

if __name__ == "__main__":
    import sys
    from gen_k01 import gen_k01
    dbg = len(sys.argv) > 1
    k1 = gen_k01(dbg, "Lk2_end", 64000); k2 = gen_k2(dbg)
    open(os.environ.get("OUT", "full.s"), "w").write(build([k1, k2], [k1, k2]))
    print("k01", k1.ninstr, k1.nnop, "k2", k2.ninstr, k2.nnop)
```

```python
from asmlib import *

WS_KT  = 0x0000000
WS_Y4  = 0x2A00000
WS_W1P = 0x0600000
WS_W2P = 0x0A00000
WS_SQ  = 0x0C00000
WS_FL  = 0x0D00000
WS_FH  = 0x0E00000
WS_XN  = 0x1000000
WS_X3  = 0x1300000
WS_H1  = 0x1600000
WS_H2  = 0x1C00000
WS_X1  = 0x2400000
WS_YF  = 0x2700000
WS_ST  = 0x2200000
WS_ST2 = 0x2300000
WS_DBG = 0x8000000
WS_SIZE = 0x10000000
NB = 2048 * 640 * 2
FLS = 8
SPIN = 4000000

def srd(k, d, lo, hi, nbytes):
    k(f"s_mov_b32 s{d}, s{lo}\ns_mov_b32 s{d+1}, s{hi}\ns_mov_b32 s{d+2}, {nbytes}\ns_mov_b32 s{d+3}, 0x20000")
def unpack_lo(k, d, s): k(f"v_lshlrev_b32 v{d}, 16, v{s}")
def unpack_hi(k, d, s): k(f"v_and_b32 v{d}, 0xffff0000, v{s}")
def unpack(k, d, s, half): (unpack_hi if half else unpack_lo)(k, d, s)
def round2(k, a, b, t):
    k(f"v_cvt_pk_bf16_f32 v{t}, v{a}, v{b}")
    unpack_lo(k, a, t); unpack_hi(k, b, t)

def ln_scalars(k, s1, s2, t):
    inv = "0x3acccccd"
    k(f"""
    v_mul_f32 v{s1}, {inv}, v{s1}
    v_mul_f32 v{s2}, {inv}, v{s2}
    v_fma_f32 v{s2}, -v{s1}, v{s1}, v{s2}
    v_max_f32 v{s2}, 0, v{s2}
    """)
    round2(k, s1, s2, t)
    k(f"""
    v_add_f32 v{s2}, 0x3727c5ac, v{s2}
    v_cvt_pk_bf16_f32 v{t}, v{s2}, v{s2}
    v_lshlrev_b32 v{s2}, 16, v{t}
    v_sqrt_f32 v{s2}, v{s2}
    v_cvt_pk_bf16_f32 v{t}, v{s2}, v{s2}
    v_lshlrev_b32 v{s2}, 16, v{t}
    v_rcp_f32 v{s2}, v{s2}
    """)

S_WS = 24
S_DBG = 20
S_WAVE = 40
S_NONCE = 56
S_SPIN = 58
S_EX = 60

def nonce_publish(k, vt):
    l = k.newlabel("Lnp")
    k(f"""
    s_or_b32 s59, s2, s{S_WAVE}
    s_cmp_lg_u32 s59, 0
    s_cbranch_scc1 {l}
    s_memrealtime s[{S_NONCE}:{S_NONCE+1}]
    s_waitcnt lgkmcnt(0)
    s_or_b32 s{S_NONCE}, s{S_NONCE}, 1
    v_mov_b32 v{vt}, s{S_NONCE}
    v_mov_b32 v{vt+1}, s{S_NONCE+1}
    s_mov_b64 exec, 1
    buffer_store_dwordx2 v[{vt}:{vt+1}], off, s[{S_DBG}:{S_DBG+3}], 0 sc1
    s_mov_b64 exec, -1
    {l}:
    """)

def nonce_get(k, vt, abort):
    l = k.newlabel("Lng")
    k(f"""
    {l}:
    buffer_load_dwordx2 v[{vt}:{vt+1}], off, s[{S_DBG}:{S_DBG+3}], 0 sc1
    s_waitcnt vmcnt(0)
    v_readfirstlane_b32 s{S_NONCE}, v{vt}
    v_readfirstlane_b32 s{S_NONCE+1}, v{vt+1}
    s_sub_u32 s{S_SPIN}, s{S_SPIN}, 1
    s_cbranch_scc1 {abort}
    s_cmp_eq_u32 s{S_NONCE}, 0
    s_cbranch_scc1 {l}
    """)

def flag_set(k, vt, soff):
    k(f"""
    v_mov_b32 v{vt}, s{S_NONCE}
    v_mov_b32 v{vt+1}, s{S_NONCE+1}
    s_mov_b64 exec, 1
    buffer_store_dwordx2 v[{vt}:{vt+1}], off, s[{S_WS}:{S_WS+3}], s{soff} sc1
    s_mov_b64 exec, -1
    """)

def flag_wait(k, vt, vaddr, soff, nlanes, abort):
    l = k.newlabel("Lfw")
    mask = (1 << nlanes) - 1
    if nlanes == 64: k("s_mov_b64 exec, -1")
    elif nlanes <= 32: k(f"s_mov_b64 exec, {hex(mask)}")
    else: k(f"s_mov_b32 exec_lo, -1\ns_mov_b32 exec_hi, {hex(mask >> 32)}")
    k(f"""
    {l}:
    buffer_load_dwordx2 v[{vt}:{vt+1}], v{vaddr}, s[{S_WS}:{S_WS+3}], s{soff} offen sc1
    s_waitcnt vmcnt(0)
    s_sub_u32 s{S_SPIN}, s{S_SPIN}, 1
    s_cbranch_scc1 {abort}
    v_cmp_ne_u64 vcc, s[{S_NONCE}:{S_NONCE+1}], v[{vt}:{vt+1}]
    s_cbranch_vccnz {l}
    s_mov_b64 exec, -1
    """)
```

```python
from gen_common import *

HCP = 4160
UROFF = 4 * HCP
CP = UROFF + 4608
import os
STF = " sc1"
TLBW = int(os.environ.get("TLBW", "0"))
HWAIT = True
CLK = False

def prologue(k, endlbl):
    k(f"""
    s_cmp_ge_u32 s2, 256
    s_cbranch_scc1 {endlbl}
    """)
    if k.stb is not None:
        for i in range(8): k.stamp(i)
    k(f"""
    s_load_dwordx16 s[64:79], s[0:1], 0
    s_load_dwordx4 s[80:83], s[0:1], 64
    s_load_dwordx2 s[20:21], s[0:1], 88
    s_load_dwordx2 s[24:25], s[0:1], 96
    v_lshlrev_b32 v3, 4, v0                 ; tid*16
    """)

def prologue2(k):
    k(f"""
    v_lshrrev_b32 v1, 6, v0
    v_and_b32 v2, 63, v0                    ; lane
    v_readfirstlane_b32 s{S_WAVE}, v1
    s_mov_b32 s50, 0x05040100
    s_mov_b32 s51, 0x07060302
    s_mov_b32 s{S_SPIN}, {SPIN}
    s_mov_b32 s22, 256
    s_mov_b32 s23, 0x20000
    s_mov_b32 s26, {WS_SIZE}
    s_mov_b32 s27, 0x20000
    """)

def code_prefetch(k, start, end, nbytes, vt):
    n16 = (nbytes + 16383) // 16384
    k(f"""
    s_getpc_b64 s[28:29]
    Lpc_{k.name}:
    s_add_u32 s28, s28, {start}-Lpc_{k.name}
    s_addc_u32 s29, s29, -1
    s_mov_b32 s30, {end}-{start}
    s_mov_b32 s31, 0x20000
    s_lshr_b32 s3, s2, 3
    s_and_b32 s3, s3, 3
    s_lshl_b32 s3, s3, 12
    """)
    for i in range(n16):
        k(f"buffer_load_dwordx4 v[{vt}:{vt+3}], v3, s[28:31], s3 offen")
        if i < n16 - 1: k("s_add_u32 s3, s3, 16384")

def phase1(k, endlbl):
    lskip = k.newlabel("Lp1")
    k(f"""
    s_and_b32 s41, s2, 7                    ; cb
    s_lshr_b32 s42, s2, 3                   ; rb
    v_lshrrev_b32 v4, 4, v0
    v_min_u32 v4, 9, v4                     ; Gl
    v_and_b32 v5, 15, v0                    ; tql
    s_lshl_b32 s3, s42, 4
    v_add_u32 v6, s3, v5                    ; tq
    v_mul_u32_u24 v7, 5120, v6
    s_mul_i32 s3, s41, 160
    v_lshl_add_u32 v7, v4, 4, v7
    v_add_u32 v7, s3, v7
    s_mov_b32 s5, 0x7fffff00
    v_subrev_u32 v56, 3840, v7
    v_subrev_u32 v57, 2560, v7
    v_subrev_u32 v58, 1280, v7
    v_min_u32 v56, s5, v56
    v_min_u32 v57, s5, v57
    v_min_u32 v58, s5, v58
    s_mul_i32 s3, s41, 640
    v_lshlrev_b32 v59, 6, v4
    v_add_u32 v59, s3, v59
    """)
    prologue2(k)
    k("s_waitcnt lgkmcnt(0)")
    srd(k, 8, 66, 67, NB); srd(k, 12, 68, 69, NB); srd(k, 16, 70, 71, 640 * 8)
    nonce_publish(k, 8)
    k.vm = []
    if TLBW:
        lt = k.newlabel("Ltw")
        k(f"""
        s_cmp_lg_u32 s{S_WAVE}, 3
        s_cbranch_scc1 {lt}
        s_load_dwordx2 s[36:37], s[0:1], 80
        v_lshlrev_b32 v8, {TLBW}, v2
        """)
        nst = (0x3000000 >> (TLBW + 6)) or 1
        k("s_mov_b32 s3, 0")
        for i in range(nst):
            k(f"buffer_load_dword v244, v8, s[24:27], s3 offen\ns_add_u32 s3, s3, {64 << TLBW}")
        k("s_mov_b32 s30, 2621440\ns_mov_b32 s31, 0x20000\nv_lshlrev_b32 v8, 16, v2")
        for p in (64, 72):
            k(f"s_mov_b32 s28, s{p}\ns_mov_b32 s29, s{p+1}\nbuffer_load_dword v244, v8, s[28:31], 0 offen")
        k("s_waitcnt lgkmcnt(0)\ns_mov_b32 s28, s36\ns_mov_b32 s29, s37\nbuffer_load_dword v244, v8, s[28:31], 0 offen")
        k("s_mov_b32 s30, 1966080")
        for p in (78, 80, 82):
            k(f"s_mov_b32 s28, s{p}\ns_mov_b32 s29, s{p+1}\nbuffer_load_dword v244, v8, s[28:31], 0 offen")
        k(f"s_branch {lskip}\n{lt}:")
        k.vm = []
    else:
        lt = k.newlabel("Ltw")
        k(f"s_cmp_lg_u32 s{S_WAVE}, 3\ns_cbranch_scc1 {lt}")
        start, end, nbytes = k.cpf
        k(f"""
        s_getpc_b64 s[28:29]
        Lpc_{k.name}:
        s_add_u32 s28, s28, {start}-Lpc_{k.name}
        s_addc_u32 s29, s29, -1
        s_mov_b32 s30, {end}-{start}
        s_mov_b32 s31, 0x20000
        s_lshr_b32 s3, s2, 3
        s_and_b32 s3, s3, 15
        s_lshl_b32 s3, s3, 10
        v_lshlrev_b32 v8, 4, v2
        """)
        for i in range((nbytes + 16383) // 16384):
            k(f"buffer_load_dwordx4 v[240:243], v8, s[28:31], s3 offen\ns_add_u32 s3, s3, 16384")
        k(f"s_branch {lskip}\n{lt}:")
        k.vm = []
    k("""
    buffer_load_dwordx4 v[108:111], v59, s[16:19], 0 offen
    buffer_load_dwordx4 v[112:115], v59, s[16:19], 0 offen offset:16
    buffer_load_dwordx4 v[116:119], v59, s[16:19], 0 offen offset:32
    buffer_load_dwordx4 v[120:123], v59, s[16:19], 0 offen offset:48
    """, tag="sh")
    k("""
    buffer_load_dwordx4 v[76:79], v7, s[8:11], 0 offen
    buffer_load_dwordx4 v[80:83], v7, s[8:11], 0 offen offset:1280
    buffer_load_dwordx4 v[84:87], v7, s[8:11], 0 offen offset:2560
    buffer_load_dwordx4 v[88:91], v7, s[8:11], 0 offen offset:3840
    buffer_load_dwordx4 v[92:95], v7, s[12:15], 0 offen
    buffer_load_dwordx4 v[96:99], v7, s[12:15], 0 offen offset:1280
    buffer_load_dwordx4 v[100:103], v7, s[12:15], 0 offen offset:2560
    buffer_load_dwordx4 v[104:107], v7, s[12:15], 0 offen offset:3840
    buffer_load_dwordx4 v[64:67], v56, s[8:11], 0 offen
    buffer_load_dwordx4 v[68:71], v57, s[8:11], 0 offen
    buffer_load_dwordx4 v[72:75], v58, s[8:11], 0 offen
    """, tag="kv")
    k(f"""
    v_lshlrev_b32 v63, 15, v4               ; 2Gl*16384
    v_lshl_add_u32 v63, v6, 4, v63          ; + tq*16
    s_mul_i32 s3, s41, {20*16384}
    s_add_u32 s36, s3, {WS_KT}
    s_add_u32 s37, s3, {WS_KT + 8192}
    s_add_u32 s38, s3, {WS_KT + 16384}
    s_add_u32 s39, s3, {WS_KT + 24576}
    """)
    k.wait_vm("sh")
    SH = 124
    for p in range(4):
        for j in range(4):
            unpack(k, SH + 8 * p + 2 * j, 108 + 2 * (2 * p) + (j >> 1), j & 1)
            unpack(k, SH + 8 * p + 2 * j + 1, 108 + 2 * (2 * p + 1) + (j >> 1), j & 1)
    k("s_waitcnt vmcnt(0)")
    k.stamp(1)
    for p in range(4):
        for rho in range(7):
            unpack_lo(k, 8 + 2 * rho, 64 + 4 * rho + p); unpack_hi(k, 9 + 2 * rho, 64 + 4 * rho + p)
        for i in range(4):
            a = 32 + 2 * i
            unpack_lo(k, 30, 92 + 4 * i + p); unpack_hi(k, 31, 92 + 4 * i + p)
            k(f"v_pk_mul_f32 v[{a}:{a+1}], v[{8+2*i}:{9+2*i}], v[{SH+8*p+6}:{SH+8*p+7}]")
            for j in (2, 1, 0):
                rho = i + 3 - j
                k(f"v_pk_fma_f32 v[{a}:{a+1}], v[{8+2*rho}:{9+2*rho}], v[{SH+8*p+2*j}:{SH+8*p+2*j+1}], v[{a}:{a+1}]")
            k(f"v_pk_mul_f32 v[{a}:{a+1}], v[{a}:{a+1}], v[30:31]")
        for e in range(2):
            c = 2 * p + e
            k(f"v_cvt_pk_bf16_f32 v{40+2*c}, v{38+e}, v{36+e}\nv_cvt_pk_bf16_f32 v{41+2*c}, v{34+e}, v{32+e}")
        k(f"buffer_store_dwordx4 v[{40+4*p}:{43+4*p}], v63, s[24:27], s{36+p} offen sc1", tag="kts")
    k(f"{lskip}:")
    k.hist = []

def p1_signal(k, endlbl, nafter):
    lw = k.newlabel("Lcw"); l3 = k.newlabel("Lc3")
    k(f"""
    s_cmp_lg_u32 s{S_WAVE}, 3
    s_cbranch_scc1 {l3}
    """)
    sv = list(k.vm)
    nonce_get(k, 16, endlbl)
    k.vm = sv
    k(f"""
    {l3}:
    s_waitcnt vmcnt({nafter})
    s_barrier
    """)
    k.stamp(2)
    k(f"""
    s_cmp_lg_u32 s{S_WAVE}, 3
    s_cbranch_scc1 {lw}
    s_lshl_b32 s6, s41, 5
    s_add_u32 s6, s6, s42
    s_lshl_b32 s6, s6, {FLS}
    s_add_u32 s6, s6, {WS_FL}
    """)
    sv = list(k.vm)
    flag_set(k, 16, 6)
    k.vm = sv
    k(f"{lw}:")

def conv_role(k, endlbl):
    k(f"""
    s_mul_i32 s46, s41, 20
    s_add_u32 s46, s46, s42                 ; g4
    s_lshl_b32 s43, s46, 2
    s_add_u32 s43, s43, s{S_WAVE}
    s_lshl_b32 s4, s43, 12
    s_add_u32 s32, s72, s4
    s_addc_u32 s33, s73, 0
    s_mov_b32 s34, 4096
    s_mov_b32 s35, 0x20000
    v_lshlrev_b32 v60, 4, v2                ; lane*16
    v_subrev_u32 v61, 32, v60
    v_subrev_u32 v62, 16, v60
    v_min_u32 v61, s5, v61
    v_min_u32 v62, s5, v62
    """)
    k.vm = []
    lh3 = k.newlabel("Lh3")
    def hloads():
        for rho in range(4):
            w = 160 + 8 * rho
            k(f"buffer_load_dwordx4 v[{w}:{w+3}], v60, s[32:35], 0 offen offset:{1024*rho}\nbuffer_load_dwordx2 v[{w+4}:{w+5}], v60, s[32:35], 0 offen offset:{1024*rho+16}", tag="h")
        k("buffer_load_dwordx4 v[192:195], v61, s[32:35], 0 offen\nbuffer_load_dwordx2 v[196:197], v62, s[32:35], 0 offen", tag="h")
    hloads()
    k(f"""
    s_lshl_b32 s4, s43, 1
    s_and_b32 s4, s4, -4
    s_load_dword s44, s[74:75], s4          ; D pair
    s_mul_i32 s45, s{S_WAVE}, {CP}
    v_and_b32 v8, 15, v2                    ; n / m
    v_lshrrev_b32 v9, 4, v2                 ; kq / q
    """)
    p1_signal(k, endlbl, 10)
    k(f"""
    v_mov_b32 v12, 0
    v_mov_b32 v13, 0
    v_mov_b32 v14, 0
    v_mov_b32 v15, 0
    v_and_b32 v10, 31, v2
    v_lshlrev_b32 v10, 4, v10
    v_add_u32 v10, s45, v10
    ds_write_b128 v10, v[12:15] offset:{UROFF + 4096}
    v_add_u32 v18, 1, v8                    ; m+1
    v_and_b32 v19, 3, v18                   ; e
    v_sub_u32 v18, v18, v19
    v_lshl_add_u32 v18, v9, 3, v18
    v_lshlrev_b32 v18, 1, v18
    v_mul_u32_u24 v19, {HCP}, v19
    v_add3_u32 v228, v18, v19, s45          ; vA
    v_lshlrev_b32 v18, 5, v8
    v_sub_u32 v18, {UROFF + 480}, v18
    v_lshl_add_u32 v18, v9, 4, v18
    v_add_u32 v229, s45, v18                ; vB
    v_lshlrev_b32 v19, 3, v0
    v_sub_u32 v230, {UROFF + 4088 - 2048}, v19
    v_add_u32 v231, {2*CP}, v230
    v_lshlrev_b32 v232, 5, v8
    v_lshl_add_u32 v232, v9, 3, v232
    v_add_u32 v232, s45, v232
    v_lshlrev_b32 v233, 2, v0
    v_add_u32 v234, {2*CP}, v233
    v_lshlrev_b32 v235, {FLS}, v2
    v_add_u32 v236, s45, v60
    s_waitcnt lgkmcnt(0)
    s_and_b32 s4, s43, 1
    s_lshl_b32 s4, s4, 4
    s_lshr_b32 s44, s44, s4
    s_and_b32 s44, s44, 0xffff              ; D bits
    v_lshl_add_u32 v18, v9, 3, v8
    v_sub_u32 v18, 15, v18                  ; j*
    v_and_b32 v19, 1, v18
    v_lshlrev_b32 v19, 4, v19
    v_lshlrev_b32 v19, v19, s44
    v_lshrrev_b32 v18, 1, v18
    """)
    for e in range(4):
        k(f"v_cmp_eq_u32 vcc, {e}, v18\nv_cndmask_b32 v{224+e}, 0, v19, vcc")
    k("s_waitcnt vmcnt(0)")
    for rho in range(5):
        w = 160 + 8 * rho; off = 32 + 1024 * rho if rho < 4 else 0
        t = 64 + 12 * rho
        k(f"ds_write_b128 v236, v[{w}:{w+3}] offset:{off}")
        for i in range(4): k(f"v_alignbyte_b32 v{t+i}, v{w+i+1}, v{w+i}, 2")
        k(f"ds_write_b128 v236, v[{t}:{t+3}] offset:{off + HCP}")
        for i in range(4): k(f"v_mov_b32 v{t+4+i}, v{w+1+i}")
        k(f"ds_write_b128 v236, v[{t+4}:{t+7}] offset:{off + 2*HCP}")
        for i in range(4): k(f"v_alignbyte_b32 v{t+8+i}, v{w+i+2}, v{w+i+1}, 2")
        k(f"ds_write_b128 v236, v[{t+8}:{t+11}] offset:{off + 3*HCP}")
    lw = k.newlabel("Lcw")
    k(f"""
    s_lshl_b32 s47, s46, 14                 ; g4*16384
    s_add_u32 s36, s47, {WS_KT}
    s_lshl_b32 s7, s41, {5+FLS}
    s_add_u32 s7, s7, {WS_FL}
    s_cmp_lg_u32 s{S_WAVE}, 3
    s_cbranch_scc1 {lw}
    """)
    flag_wait(k, 16, 235, 7, 32, endlbl)
    k(f"{lw}:")
    k("s_barrier")
    k.stamp(3)
    k.vm = []
    for i in range(4):
        k(f"buffer_load_dwordx4 v[{208+4*i}:{211+4*i}], v3, s[24:27], s36 offen sc1", tag=("kt", i))
        if i < 3: k("s_add_u32 s36, s36, 4096")
    ACC = 32
    def bufA(p, b): return 64 + 64 * p + 4 * b
    def bufB(p, a): return 96 + 64 * p + 4 * a
    def rdA(r, x):
        a = bufA(r & 1, x)
        return [f"ds_read_b64 v[{a}:{a+1}], v228 offset:{512*x + 64*r}", f"ds_read_b64 v[{a+2}:{a+3}], v228 offset:{512*x + 64*r + 8}"]
    def rdB(r, x):
        b = bufB(r & 1, x)
        return [f"ds_read_b128 v[{b}:{b+3}], v229 offset:{512*(7-x) + 64*r}"]
    k("s_waitcnt lgkmcnt(0)")
    for x in range(8):
        for rd in rdA(0, x): k(rd)
    for i in range(4):
        k.wait_vm(("kt", i))
        for e in range(2):
            k(f"ds_write_b64 v{230 + (i>>1)}, v[{208+4*i+2*e}:{209+4*i+2*e}] offset:{e*CP + 2048*(1-(i&1))}")
    k("s_waitcnt lgkmcnt(0)\ns_barrier")
    k.stamp(4)
    k("s_waitcnt lgkmcnt(0)")
    pairs = sorted([(b, a) for b in range(8) for a in range(8) if a + b <= 7], key=lambda t: (max(t), t))
    pairs0 = sorted([(b, a) for b in list(range(8)) + ["D"] for a in range(8) if b == "D" or a + b <= 7], key=lambda t: t[1])
    for x in range(8):
        for rd in rdB(0, x): k(rd, tag=("r", 0, x))
    k(f"buffer_load_dwordx2 v[238:239], off, s[{S_DBG}:{S_DBG+3}], 0 sc1")
    started = set()
    NR = 8
    for r in range(NR):
        nxt = []
        if r < NR - 1:
            for x in range(8): nxt += rdA(r + 1, x) + rdB(r + 1, x)
        p = r & 1
        plist = pairs0 if r == 0 else pairs
        for n, (b, a) in enumerate(plist):
            if r == 0:
                k.wait_lg(("r", 0, a))
            elif n == 0:
                k("s_waitcnt lgkmcnt(0)")
            i = a + b if b != "D" else a
            c = f"v[{ACC+4*i}:{ACC+4*i+3}]" if i in started else "0"
            started.add(i)
            areg = bufA(p, b) if b != "D" else 224
            k(f"v_mfma_f32_16x16x32_bf16 v[{ACC+4*i}:{ACC+4*i+3}], v[{areg}:{areg+3}], v[{bufB(p,a)}:{bufB(p,a)+3}], {c}")
            if r == 0 and n == 8: k.wait_lg(("r", 0, 7))
            if nxt and (r > 0 or n >= 8): k(nxt.pop(0), tag=("r", r + 1))
        while nxt: k(nxt.pop(0), tag=("r", r + 1))
    k.stamp(5)
    k(f"""
    s_lshl_b32 s37, s47, 1
    s_add_u32 s37, s37, {WS_Y4}
    v_and_b32 v10, 1, v0
    v_cmp_eq_u32 vcc, 1, v10
    v_mov_b32 v11, s50
    v_mov_b32 v12, s51
    v_cndmask_b32 v11, v11, v12, vcc
    v_lshrrev_b32 v233, 1, v0
    v_lshlrev_b32 v233, 2, v233
    v_add_u32 v234, {2*CP}, v233
    """)
    for t in range(8):
        a = ACC + 4 * t
        k(f"v_cvt_pk_bf16_f32 v{64+2*t}, v{a}, v{a+1}\nv_cvt_pk_bf16_f32 v{65+2*t}, v{a+2}, v{a+3}")
        k(f"ds_write_b64 v232, v[{64+2*t}:{65+2*t}] offset:{512*t}")
    k("s_waitcnt vmcnt(0)")
    for i in range(8): k(f"v_mov_b32 v{130+4*i}, v238\nv_mov_b32 v{131+4*i}, v239")
    k("s_waitcnt lgkmcnt(0)\ns_barrier")
    for i in range(8):
        for c in range(4): k(f"ds_read_b32 v{96+4*i+c}, v{233 if c < 2 else 234} offset:{(c&1)*CP + 512*i}", tag=("ys", i))
    for i in range(8):
        Y = 96 + 4 * i; oy = 128 + 4 * i
        k.wait_lg(("ys", i))
        k(f"v_perm_b32 v{oy}, v{Y+1}, v{Y}, v11\nv_perm_b32 v{oy+1}, v{Y+3}, v{Y+2}, v11")
        k(f"buffer_store_dwordx4 v[{oy}:{oy+3}], v3, s[24:27], s37 offen{STF}")
        if i < 7: k("s_add_u32 s37, s37, 4096")
    k.stamp(6)

def transp_lds(k, src, offs):
    for ci in range(8):
        sel = "s51" if ci & 1 else "s50"
        o = 192 + 4 * ci
        for e in range(4):
            k(f"v_perm_b32 v{o+e}, v{src+4*(2*e+1)+(ci>>1)}, v{src+4*(2*e)+(ci>>1)}, {sel}")
        av, off = offs[ci]
        k(f"ds_write_b128 v{av}, v[{o}:{o+3}] offset:{off}")

QTP = 528
FRP = 1040
def helper_role(k, endlbl):
    lq, lsn, lw2, lq2, lsn2, lw3 = [k.newlabel("Lh") for _ in range(6)]
    k(f"""
    s_sub_u32 s43, s2, 160                  ; bw
    s_lshl_b32 s44, s43, 2
    s_add_u32 s44, s44, s{S_WAVE}           ; Wv
    v_and_b32 v8, 15, v2
    v_lshrrev_b32 v9, 4, v2                 ; kq
    v_lshlrev_b32 v238, 4, v2               ; lane*16
    s_mul_i32 s45, s{S_WAVE}, {16*FRP}
    v_add_u32 v239, s45, v238
    v_lshlrev_b32 v235, {FLS}, v2
    """)
    k.vm = []
    p1_signal(k, endlbl, 0)
    k.vm = []
    k(f"s_cmp_ge_u32 s43, 60\ns_cbranch_scc1 {lq}")
    srd(k, 8, 78, 79, 640 * 1536 * 2); srd(k, 16, 80, 81, 640 * 1536 * 2)
    k(f"""
    s_mul_i32 s52, s44, 171
    s_lshr_b32 s52, s52, 11
    s_mul_i32 s3, s52, 12
    s_sub_u32 s53, s44, s3                  ; fg
    s_mul_i32 s7, s52, {32*3072}
    s_lshl_b32 s3, s53, 8
    s_add_u32 s7, s7, s3
    v_mul_u32_u24 v16, {8*3072}, v9
    v_lshl_add_u32 v16, v8, 4, v16
    """)
    for j in range(8):
        k(f"buffer_load_dwordx4 v[{32+4*j}:{35+4*j}], v16, s[8:11], s7 offen nt")
        k(f"buffer_load_dwordx4 v[{64+4*j}:{67+4*j}], v16, s[16:19], s7 offen nt")
        if j < 7: k(f"s_add_u32 s7, s7, 3072")
    k(f"s_branch {lw2}\n{lq}:\ns_cmp_ge_u32 s43, 92\ns_cbranch_scc1 {lw2}")
    srd(k, 16, 64, 65, NB)
    k(f"""
    s_sub_u32 s3, s44, 240
    s_lshl_b32 s3, s3, 4
    v_lshrrev_b32 v7, 3, v2
    v_add_u32 v4, s3, v7                    ; row (h=0)
    v_mul_u32_u24 v5, 1280, v4
    v_and_b32 v6, 7, v2                     ; part
    v_lshl_add_u32 v5, v6, 4, v5
    s_movk_i32 s7, 10240
    """)
    for h in range(2):
        for i in range(10): k(f"buffer_load_dwordx4 v[{16+40*h+4*i}:{19+40*h+4*i}], v5, s[16:19], {'s7' if h else '0'} offen offset:{128*i}")
    k(f"{lw2}:\ns_nop 1")
    srd(k, 12, 82, 83, 1536 * 640 * 2)
    R = 96
    k(f"""
    s_lshr_b32 s46, s44, 3                  ; kstep
    s_and_b32 s47, s44, 7                   ; ct2
    s_mul_i32 s3, s46, 171
    s_lshr_b32 s3, s3, 9                    ; ct
    s_mul_i32 s4, s3, 3
    s_sub_u32 s4, s46, s4                   ; g
    s_mul_i32 s5, s3, {96*1280}
    s_mul_i32 s7, s47, 160
    s_add_u32 s5, s5, s7
    s_add_u32 s48, s5, 10240
    s_add_u32 s49, s5, 20480
    s_lshl_b32 s4, s4, 2
    v_add_u32 v10, s4, v9
    v_mul_u32_u24 v11, 171, v10
    v_lshrrev_b32 v11, 9, v11               ; w = rho/3
    v_mul_u32_u24 v12, 3, v11
    v_sub_u32 v12, v10, v12                 ; q'
    v_mul_u32_u24 v11, {24*1280}, v11
    v_min_u32 v14, 9, v8                    ; u
    v_lshl_add_u32 v11, v14, 4, v11
    v_mul_u32_u24 v15, 2560, v12
    v_add_u32 v15, v15, v11                 ; base1
    v_mul_u32_u24 v13, 10240, v12
    v_add_u32 v13, v13, v11
    v_add_u32 v13, {6*1280}, v13            ; base2
    buffer_load_dwordx4 v[{R}:{R+3}], v15, s[12:15], s5 offen nt
    buffer_load_dwordx4 v[{R+4}:{R+7}], v15, s[12:15], s5 offen offset:1280 nt
    buffer_load_dwordx4 v[{R+8}:{R+11}], v15, s[12:15], s48 offen nt
    buffer_load_dwordx4 v[{R+12}:{R+15}], v15, s[12:15], s48 offen offset:1280 nt
    buffer_load_dwordx4 v[{R+16}:{R+19}], v15, s[12:15], s49 offen nt
    buffer_load_dwordx4 v[{R+20}:{R+23}], v15, s[12:15], s49 offen offset:1280 nt
    buffer_load_dwordx4 v[{R+24}:{R+27}], v13, s[12:15], s5 offen nt
    buffer_load_dwordx4 v[{R+28}:{R+31}], v13, s[12:15], s5 offen offset:1280 nt
    s_cmp_ge_u32 s43, 60
    s_cbranch_scc1 {lq2}
    v_mul_u32_u24 v17, {FRP}, v8
    v_lshl_add_u32 v17, v9, 8, v17
    v_add_u32 v17, s45, v17
    s_waitcnt vmcnt(8)
    """)
    k.stamp(3)
    transp_lds(k, 32, [(17, 64 * (fi >> 1) + 16 * (fi & 1)) for fi in range(8)])
    transp_lds(k, 64, [(17, 64 * (fi >> 1) + 16 * (fi & 1) + 32) for fi in range(8)])
    k("s_waitcnt lgkmcnt(0)")
    for f in range(16): k(f"ds_read_b128 v[{32+4*f}:{35+4*f}], v239 offset:{f*FRP}", tag=("f", f))
    k(f"s_lshl_b32 s54, s53, 4\ns_mul_i32 s55, s52, 3072\ns_add_u32 s55, s55, {WS_W1P}")
    for f in range(16):
        k(f"""
        s_add_u32 s3, s54, {f}                  ; fo
        s_mul_i32 s4, s3, 171
        s_lshr_b32 s4, s4, 9                    ; cw
        s_mul_i32 s5, s4, {57*1024}
        s_lshl_b32 s3, s3, 10
        s_add_u32 s3, s3, s5
        s_add_u32 s3, s3, s55
        """)
        k.wait_lg(("f", f))
        k(f"buffer_store_dwordx4 v[{32+4*f}:{35+4*f}], v238, s[24:27], s3 offen{STF}")
    k(f"s_waitcnt vmcnt(16)\ns_branch {lw3}\n{lq2}:")
    k(f"s_waitcnt vmcnt(0)\ns_cmp_ge_u32 s43, 92\ns_cbranch_scc1 {lw3}")
    k("s_mov_b32 s3, 0x3f803f80")
    k.stamp(3)
    for h in range(2):
        A = 176 + 4 * h
        for i in range(10):
            for d in range(4):
                r = 16 + 40 * h + 4 * i + d
                first = i == 0 and d < 2
                k(f"v_dot2_f32_bf16 v{A+2*(d&1)}, v{r}, s3, " + ("0" if first else f"v{A+2*(d&1)}"))
                k(f"v_dot2_f32_bf16 v{A+1+2*(d&1)}, v{r}, v{r}, " + ("0" if first else f"v{A+1+2*(d&1)}"))
    for h in range(2):
        A = 176 + 4 * h
        k(f"v_add_f32 v{A}, v{A}, v{A+2}\nv_add_f32 v{A+1}, v{A+1}, v{A+3}")
    for mod in ("quad_perm:[1,0,3,2]", "quad_perm:[2,3,0,1]", "row_half_mirror"):
        for r in (176, 177, 180, 181): k(f"v_add_f32_dpp v{r}, v{r}, v{r} {mod} row_mask:0xf bank_mask:0xf")
    for h in range(2):
        A = 176 + 4 * h
        ln_scalars(k, A, A + 1, A + 2)
        k(f"v_mul_f32 v{A}, v{A}, v{A+1}")
    k(f"""
    v_lshlrev_b32 v4, 4, v4
    """)
    nonce_get(k, 178, endlbl)
    k(f"""
    v_mov_b32 v182, v178
    v_mov_b32 v183, v179
    s_mov_b32 s3, {WS_SQ}
    s_mov_b32 exec_lo, 0x01010101
    s_mov_b32 exec_hi, 0x01010101
    buffer_store_dwordx4 v[176:179], v4, s[24:27], s3 offen sc1
    buffer_store_dwordx4 v[180:183], v4, s[24:27], s3 offen offset:128 sc1
    s_mov_b64 exec, -1
    """)
    k(f"{lw3}:\ns_nop 1")
    k.stamp(4)
    k(f"""
    v_lshrrev_b32 v19, 2, v14
    v_mul_u32_u24 v19, {2*FRP}, v19
    v_and_b32 v20, 3, v14
    v_cmp_le_u32 vcc, 8, v14
    v_lshlrev_b32 v21, 6, v20
    v_lshlrev_b32 v22, 7, v20
    v_cndmask_b32 v21, v21, v22, vcc
    v_add_u32 v19, v19, v21
    v_mov_b32 v21, {FRP}
    v_cndmask_b32 v21, v21, 64, vcc
    v_lshl_add_u32 v19, v9, 8, v19
    v_add_u32 v24, s45, v19
    v_add_u32 v25, v24, v21
    s_mul_i32 s3, s47, 48
    s_add_u32 s3, s3, s46
    s_mul_i32 s3, s3, 5120
    s_add_u32 s3, s3, {WS_W2P}
    s_add_u32 s4, s3, 4096
    s_waitcnt lgkmcnt(0)
    """)
    transp_lds(k, R, [(24 if di < 4 else 25, 16 * (di & 3)) for di in range(8)])
    k("s_waitcnt lgkmcnt(0)")
    for f in range(5): k(f"ds_read_b128 v[{128+4*f}:{131+4*f}], v239 offset:{f*FRP}", tag=("g", f))
    lf1 = k.newlabel("Lf1")
    k(f"""
    s_cmp_ge_u32 s43, 60
    s_cbranch_scc1 {lf1}
    s_waitcnt vmcnt(0)
    s_barrier
    s_cmp_lg_u32 s{S_WAVE}, 3
    s_cbranch_scc1 {lf1}
    s_lshl_b32 s5, s43, {FLS}
    s_add_u32 s5, s5, {WS_FL + ((256 + 128) << FLS)}
    """)
    flag_set(k, 180, 5)
    k(f"{lf1}:")
    for f in range(5):
        k.wait_lg(("g", f))
        if f < 4: k(f"buffer_store_dwordx4 v[{128+4*f}:{131+4*f}], v238, s[24:27], s3 offen offset:{1024*f}{STF}")
        else: k(f"buffer_store_dwordx4 v[{128+4*f}:{131+4*f}], v238, s[24:27], s4 offen{STF}")
    lp = k.newlabel("Lhp")
    k(f"""
    s_waitcnt vmcnt(0)
    s_barrier
    s_cmp_lg_u32 s{S_WAVE}, 3
    s_cbranch_scc1 {lp}
    s_lshl_b32 s3, s43, {FLS}
    s_add_u32 s3, s3, {WS_FL + (256 << FLS)}
    """)
    flag_set(k, 180, 3)
    lh = k.newlabel("Lhh")
    k(f"""
    s_mul_i32 s3, s43, 5
    s_mul_i32 s3, s3, 171
    s_lshr_b32 s3, s3, 9
    s_lshl_b32 s3, s3, 15
    s_add_u32 s3, s3, {WS_Y4 + 8}
    {lh}:
    s_sleep {int(os.environ.get("HSL", 8))}
    buffer_load_dwordx2 v[180:181], off, s[24:27], s3 sc1
    s_waitcnt vmcnt(0)
    s_sub_u32 s{S_SPIN}, s{S_SPIN}, 1
    s_cbranch_scc1 {endlbl}
    v_cmp_ne_u64 vcc, s[{S_NONCE}:{S_NONCE+1}], v[180:181]
    s_cbranch_vccnz {lh}
    {lp}:
    """)
    k.stamp(6)

L2PF = False
def gen_front(k, dbg, END, code_bytes):
    k.stb = 84 if dbg else None
    prologue(k, END)
    k.cpf = (k.name, END, code_bytes)
    phase1(k, END)
    k("s_cmp_ge_u32 s2, 160\ns_cbranch_scc1 Lk01_help")
    conv_role(k, END)
    k("s_branch Lk01_fin")
    k.hist = []; k.vm = []; k.lg = []
    k("Lk01_help:")
    helper_role(k, END)
    k("Lk01_fin:\ns_nop 4")
    k.hist = []; k.vm = []; k.lg = []
    if dbg:
        k("s_waitcnt lgkmcnt(0)")
        k.stamp(7)
        lbl = k.newlabel("Lst")
        k(f"s_lshl_b32 s62, s2, 5\ns_add_u32 s62, s62, {WS_DBG}\ns_waitcnt lgkmcnt(0)\ns_cmp_lg_u32 s{S_WAVE}, 0\ns_cbranch_scc1 {lbl}")
        for i in range(8): k(f"v_mov_b32 v{244+i}, s{k.stb+2*i}")
        k(f"s_mov_b64 exec, 1\nbuffer_store_dwordx4 v[244:247], off, s[24:27], s62\nbuffer_store_dwordx4 v[248:251], off, s[24:27], s62 offset:16\ns_mov_b64 exec, -1\n{lbl}:")
        k.vm = []
    k.stb = None

if __name__ == "__main__":
    import sys
    CLK = len(sys.argv) > 2
    k = gen_k01(len(sys.argv) > 1)
    open("k01.s", "w").write(build([k], [k]))
    print("k01", k.ninstr, k.nnop)
```

```python
import struct, os
EXP = os.environ.get("EXP", "").split(",")
from gen_common import *
from sched import *
def ENV(n, d): return int(os.environ.get(n, d))

TP = 20480
HP = 49152
NL = 27
L_W2 = 49152
L_SCR = L_W2 + 4 * NL * 1024
V_L16 = 7
V_WL = 4
V_NON = 2
V_FLG = 9
V_XFP, V_XFS = 12, 13
V_RDP, V_RDS = 14, 15
V_OUP, V_OUS = 16, 17
V_STW, V_STR = 18, 19
V_PL = 10
V_CS = 20
V_XR = 32
V_ST = 44
V_TMP = 56
V_N = 63
RA, RB, TB, SP = 80, 128, 176, 208
A_Y = 240
A_ONES = 252
LOG2E = 1.4426950408889634
NL2E = hex(struct.unpack("<I", struct.pack("<f", -LOG2E))[0])
PACE = ENV("PACE", 20); PACE2 = ENV("PACE2", 12)
KB = list(range(8, 20)) + list(range(8))
KORD = {(0, 0): KB, (0, 1): KB, (1, 0): list(range(20)), (1, 1): KB}
PGORD = [[0, 1, 2, 3], [2, 3, 0, 1]]

def hq(i): return RA + 4 * i if i < 12 else SP + 4 * (i - 12)

def gen_k2(dbg=False):
    from gen_k01 import gen_front
    k = K("interleave_layers__ssm_conv_h3__swiglu_ffn__prompt_kernel", 256, 256, lds=160 * 1024, vgpr=256, agpr=256, sgpr=102)
    END = "Lk2_end"
    gen_front(k, dbg, END, 64000)
    k.tl = dbg
    G = Glob(k); D = Direct(k, G); D0 = Direct(k)
    MAP = os.environ.get("MAP", "8")
    MAPC = {
     "8": "s_lshr_b32 s41, s3, 2\ns_lshl_b32 s41, s41, 3\ns_and_b32 s5, s4, 7\ns_add_u32 s41, s41, s5\ns_and_b32 s42, s3, 3\ns_lshl_b32 s42, s42, 2\ns_lshr_b32 s5, s4, 3\ns_add_u32 s42, s42, s5",
     "4a": "s_lshr_b32 s41, s3, 1\ns_lshl_b32 s41, s41, 2\ns_and_b32 s5, s4, 3\ns_add_u32 s41, s41, s5\ns_and_b32 s42, s3, 1\ns_lshl_b32 s42, s42, 3\ns_lshr_b32 s5, s4, 2\ns_add_u32 s42, s42, s5",
     "4b": "s_lshr_b32 s41, s3, 1\ns_lshl_b32 s41, s41, 2\ns_and_b32 s5, s4, 3\ns_add_u32 s41, s41, s5\ns_and_b32 s42, s3, 1\ns_lshl_b32 s42, s42, 2\ns_bfe_u32 s5, s4, 0x20002\ns_add_u32 s42, s42, s5\ns_lshr_b32 s5, s4, 4\ns_lshl_b32 s5, s5, 3\ns_add_u32 s42, s42, s5",
     "2": "s_lshl_b32 s41, s3, 1\ns_and_b32 s5, s4, 1\ns_add_u32 s41, s41, s5\ns_lshr_b32 s42, s4, 1",
    }[MAP]
    NQ, NY, NS, NX, NN, NT = 80, 208, 104, 220, 120, 132
    NA = 232
    NY4 = 176
    k(f"""
    s_load_dwordx2 s[16:17], s[0:1], 80
    s_mov_b32 s8, s64
    s_mov_b32 s9, s65
    s_and_b32 s3, s2, 7                     ; x
    s_lshr_b32 s4, s2, 3                    ; r
    {MAPC}
    s_lshl_b32 s45, s41, 4
    s_add_u32 s45, s45, s42                 ; L = cl*16+i
    s_lshl_b32 s3, s45, 3
    v_and_b32 v{NT}, 7, v0                  ; tk
    v_add_u32 v{NT+1}, s3, v{NT}            ; token
    v_lshrrev_b32 v{NT+2}, 3, v0            ; Gl
    v_lshlrev_b32 v{NT+4}, 4, v{NT+1}             ; token*16
    v_lshl_add_u32 v{NT+5}, v{NT+2}, 16, v{NT+4}  ; y voffset
    v_mul_u32_u24 v{NT+3}, 1280, v{NT+1}
    v_lshl_add_u32 v{NT+3}, v{NT+2}, 4, v{NT+3}   ; q voffset
    s_mov_b32 s10, {NB}
    s_mov_b32 s11, 0x20000
    s_cmp_lt_u32 s{S_WAVE}, 2
    s_cselect_b32 s28, 0, 0x70000000
    s_cselect_b64 s[74:75], -1, 0
    v_and_b32 v{V_FLG}, 63, v0
    v_lshlrev_b32 v{V_FLG}, {FLS}, v{V_FLG}
    buffer_load_dwordx2 v[{V_NON}:{V_NON+1}], off, s[{S_DBG}:{S_DBG+3}], 0 sc1
    buffer_load_dwordx4 v[{NQ}:{NQ+3}], v{NT+3}, s[8:11], 0 offen
    buffer_load_dwordx4 v[{NQ+4}:{NQ+7}], v{NT+3}, s[8:11], 0 offen offset:512
    buffer_load_dwordx4 v[{NQ+8}:{NQ+11}], v{NT+3}, s[8:11], s28 offen offset:1024
    """)
    k.ts("start")
    def pack_wait(offs, nl):
        lw = k.newlabel("Lpw"); l1 = k.newlabel("Lp1"); l2 = k.newlabel("Lp2")
        sv = list(k.vm)
        k(f"s_cmp_lg_u32 s{S_WAVE}, 3\ns_cbranch_scc1 {lw}")
        for i, o in enumerate(offs): k(f"s_mov_b32 s{3+i}, {WS_FL + (o << FLS)}")
        k(f"s_branch {l2}\n{l1}:\ns_sleep {ENV('PSL', 4)}\n{l2}:")
        for i in range(len(offs)): k(f"buffer_load_dwordx2 v[{V_TMP+16+2*i}:{V_TMP+17+2*i}], v{V_FLG}, s[24:27], s{3+i} offen sc1")
        k(f"s_waitcnt vmcnt(0)\ns_sub_u32 s{S_SPIN}, s{S_SPIN}, 1\ns_cbranch_scc1 {END}")
        k(f"v_cmp_ne_u64 vcc, s[{S_NONCE}:{S_NONCE+1}], v[{V_TMP+16}:{V_TMP+17}]")
        if len(offs) > 1: k(f"v_cmp_ne_u64 s[68:69], s[{S_NONCE}:{S_NONCE+1}], v[{V_TMP+18}:{V_TMP+19}]\ns_or_b64 vcc, vcc, s[68:69]")
        if nl < 64: k(f"s_and_b32 vcc_hi, vcc_hi, {hex((1 << (nl - 32)) - 1)}")
        k(f"s_cbranch_vccnz {l1}\n{lw}:\ns_barrier")
        k.vm = sv
    pack_wait([256 + 128], 60)
    def w2f_issue():
        l = k.newlabel("Lwi")
        k(f"s_cmp_lg_u32 s{S_WAVE}, 3\ns_cbranch_scc1 {l}\ns_mov_b32 s3, {WS_FL + (256 << FLS)}\ns_mov_b32 s4, {WS_FL + ((256 + 32) << FLS)}")
        k.guard = True
        for i in range(2): k(f"buffer_load_dwordx2 v[{V_TMP+16+2*i}:{V_TMP+17+2*i}], v{V_FLG}, s[24:27], s{3+i} offen sc1", tag="w2f")
        k.guard = False
        k(f"{l}:")
    def w2f_check():
        lw, l1, l2 = k.newlabel("Lpw"), k.newlabel("Lp1"), k.newlabel("Lp2")
        sv = list(k.vm)
        k(f"s_cmp_lg_u32 s{S_WAVE}, 3\ns_cbranch_scc1 {lw}")
        k.wait_vm("w2f")
        k(f"s_branch {l2}\n{l1}:\ns_sleep 4\ns_mov_b32 s3, {WS_FL + (256 << FLS)}\ns_mov_b32 s4, {WS_FL + ((256 + 32) << FLS)}")
        for i in range(2): k(f"buffer_load_dwordx2 v[{V_TMP+16+2*i}:{V_TMP+17+2*i}], v{V_FLG}, s[24:27], s{3+i} offen sc1")
        k(f"""
        s_waitcnt vmcnt(0)
        s_sub_u32 s{S_SPIN}, s{S_SPIN}, 1
        s_cbranch_scc1 {END}
        {l2}:
        v_cmp_ne_u64 vcc, s[{S_NONCE}:{S_NONCE+1}], v[{V_TMP+16}:{V_TMP+17}]
        v_cmp_ne_u64 s[68:69], s[{S_NONCE}:{S_NONCE+1}], v[{V_TMP+18}:{V_TMP+19}]
        s_or_b64 vcc, vcc, s[68:69]
        s_cbranch_vccnz {l1}
        {lw}:
        """)
        k.vm = sv
    k.ts("packs")
    k.vm = []
    def y_loads(tag=None):
        for i in range(6):
            k(f"s_add_u32 s3, {'s28' if i >= 4 else '0'}, {WS_Y4 + (64*(i>>1) + (i&1))*32768}")
            k(f"buffer_load_dwordx4 v[{NY4+4*i}:{NY4+4*i+3}], v{NT+5}, s[24:27], s3 offen sc1", tag=tag)
        k(f"s_mov_b32 s3, {WS_SQ}")
        k(f"buffer_load_dwordx4 v[{NS}:{NS+3}], v{NT+4}, s[24:27], s3 offen sc1", tag=tag)
    y_loads("ny")
    LN = V_TMP + 8
    k(f"""
    v_and_b32 v{LN}, 63, v0
    s_lshl_b32 s46, s42, 2
    s_add_u32 s46, s46, s{S_WAVE}
    s_mul_i32 s46, s46, {60*1024}
    s_add_u32 s46, s46, {WS_W1P}
    v_lshlrev_b32 v{V_L16}, 4, v{LN}
    """)
    k.last_w = None; k.last_h = None; k.last_m = None
    def w_frag(nm, sb, f):
        if k.last_w != (nm, f >> 2): k(f"s_add_u32 s62, s{sb}, {1024*(f & ~3)}")
        k.last_w = (nm, f >> 2)
        k(f"buffer_load_dwordx4 a[{4*f}:{4*f+3}], v{V_L16}, s[24:27], s62 offen offset:{1024*(f%4)} sc1", tag=(nm, f))
    def dma(key, mexpr, sexpr, off, tag, sc):
        if k.last_m != key: k(f"{mexpr}\n{sexpr}")
        k.last_m = key
        k(f"buffer_load_dwordx4 v{V_L16}, s[24:27], s38 offen offset:{off}{sc} lds", tag=tag)
    def tok_dma(X, u):
        s = u // 20; ks = KORD[(0 if X == WS_XN else 1, s)][u % 20]
        dma((X, u >> 2), f"s_add_u32 m0, s49, {((u % 12) & ~3)*1024}", f"s_add_u32 s38, s48, {X + s*4*TP + (ks & ~3)*1024}", 1024 * (u % 4), ("tok", u), " sc1")
    def w2l_dma(f):
        dma(("w2l", f >> 2), f"s_add_u32 m0, s51, {(f & ~3)*1024}", f"s_add_u32 s38, s47, {(f & ~3)*1024}", 1024 * (f % 4), ("w2l", f), " sc1")
    def push_w1(f, cond=None): G.push(("w1", f), lambda: w_frag("w1", 46, f), cond)
    def push_w2(f, cond=None): G.push(("w2", f), lambda: w_frag("w2", 47, f), cond)

    for ks in KORD[(0, 0)]:
        for mt in range(3): push_w1(3 * ks + mt)
    G.burst(ENV("NB0", 8))
    D0(f"""
    s_mov_b32 s55, 0x3f803f80
    v_lshrrev_b32 v{NA}, 4, v{NT+1}
    v_mul_u32_u24 v{NA}, {TP}, v{NA}
    v_and_b32 v{NT+7}, 15, v{NT+1}
    v_lshl_add_u32 v{NA}, v{NT+7}, 4, v{NA}
    v_lshl_add_u32 v{NA}, v{NT+2}, 8, v{NA}
    s_lshl_b32 s5, s{S_WAVE}, 6
    v_lshlrev_b32 v{NT+7}, 3, v{NT}
    v_add_u32 v{NT+7}, {L_SCR}, v{NT+7}
    v_add_u32 v{NT+8}, s5, v{NT+7}
    s_mov_b32 s18, {NB}
    s_mov_b32 s19, 0x20000
    s_lshr_b32 s43, s42, 3                  ; rh
    s_and_b32 s44, s42, 7                   ; ct2
    s_mul_i32 s47, s44, 48
    s_mul_i32 s5, s{S_WAVE}, 12
    s_add_u32 s47, s47, s5
    s_mul_i32 s47, s47, 5120
    s_add_u32 s47, s47, {WS_W2P}
    s_lshl_b32 s37, s41, 3
    s_add_u32 s37, s37, s{S_WAVE}
    s_mul_i32 s48, s37, {TP}
    s_mul_i32 s49, s{S_WAVE}, 12288
    s_mul_i32 s51, s{S_WAVE}, {NL*1024}
    s_add_u32 s51, s51, {L_W2}
    v_add_u32 v{V_WL}, s51, v{V_L16}
    v_lshlrev_b32 v{V_FLG}, {FLS}, v{LN}
    v_and_b32 v{V_N}, 15, v{LN}
    v_lshrrev_b32 v{V_TMP+2}, 4, v{LN}      ; q
    s_lshl_b32 s52, s41, 3
    s_lshl_b32 s5, s43, 1
    s_add_u32 s52, s52, s5
    s_and_b32 s5, s{S_WAVE}, 1
    s_add_u32 s53, s52, s5                  ; T (stream 0)
    s_lshr_b32 s54, s{S_WAVE}, 1            ; P
    s_mul_i32 s5, s44, 10
    s_lshl_b32 s6, s54, 2
    s_add_u32 s6, s6, s5
    v_add_u32 v{V_TMP}, s6, v{V_TMP+2}
    s_mul_i32 s7, s53, {TP}
    v_lshl_add_u32 v{V_TMP+3}, v{V_N}, 4, s7
    v_lshl_add_u32 v{V_XFP}, v{V_TMP}, 8, v{V_TMP+3}
    s_lshl_b32 s7, s53, 4
    v_add_u32 v{V_TMP+1}, s7, v{V_N}        ; token
    v_mul_u32_u24 v{V_OUS}, 1280, v{V_TMP+1}
    v_lshl_add_u32 v{V_OUP}, v{V_TMP}, 4, v{V_OUS}
    v_lshlrev_b32 v{V_TMP+1}, 3, v{V_TMP+1}               ; token*8
    v_lshl_add_u32 v{V_TMP+4}, v{V_TMP}, 15, v{V_TMP+1}
    s_lshl_b32 s5, s5, 1
    s_add_u32 s5, s5, 16
    v_add_u32 v{V_TMP}, s5, v{V_TMP+2}
    v_lshl_add_u32 v{V_TMP+5}, v{V_TMP}, 14, v{V_TMP+1}
    v_lshl_add_u32 v{V_OUS}, v{V_TMP}, 3, v{V_OUS}
    v_lshrrev_b32 v{V_TMP+6}, 1, v{V_TMP}
    v_lshl_add_u32 v{V_XFS}, v{V_TMP+6}, 8, v{V_TMP+3}
    v_and_b32 v{V_TMP+6}, 1, v{V_TMP}
    v_lshl_add_u32 v{V_XFS}, v{V_TMP+6}, 3, v{V_XFS}
    """)
    def late_setup():
        D0(f"""
        s_and_b32 s5, s{S_WAVE}, 1
        s_mul_i32 s5, s5, 5120
        s_lshl_b32 s6, s54, 11
        s_add_u32 s6, s6, s5
        v_add_u32 v{V_RDP}, s6, v{V_L16}
        s_add_u32 s5, s5, 4096
        v_add_u32 v{V_RDS}, s5, v{V_L16}
        s_lshl_b32 s5, s44, 1
        s_add_u32 s5, s5, s54
        s_lshl_b32 s5, s5, 8
        s_lshl_b32 s39, s53, 12
        s_add_u32 s5, s5, s39
        v_lshlrev_b32 v{V_TMP}, 4, v{V_N}
        v_add_u32 v{V_STW}, s5, v{V_TMP}
        v_lshl_add_u32 v{V_STR}, v{V_TMP+2}, 10, v{V_TMP}
        v_mov_b32 v{V_TMP}, s55
        v_accvgpr_write_b32 a{A_ONES}, v{V_TMP}
        v_accvgpr_write_b32 a{A_ONES+1}, v{V_TMP}
        v_accvgpr_write_b32 a{A_ONES+2}, v{V_TMP}
        v_accvgpr_write_b32 a{A_ONES+3}, v{V_TMP}
        s_mul_i32 s36, s41, {8*HP}
        s_mul_i32 s5, s42, 3072
        s_add_u32 s36, s36, s5
        s_mul_i32 s5, s{S_WAVE}, 768
        s_add_u32 s36, s36, s5
        s_mul_i32 s35, s52, {HP}
        s_mul_i32 s5, s{S_WAVE}, 12288
        s_add_u32 s35, s35, s5
        s_mov_b32 s64, -1
        s_mov_b32 s65, 0xffff
        s_lshl_b32 s66, s45, 10
        s_lshl_b32 s5, s{S_WAVE}, 8
        s_add_u32 s66, s66, s5
        s_lshl_b32 s67, s41, 14
        s_lshl_b32 s5, s{S_WAVE}, 12
        s_add_u32 s67, s67, s5
        s_cmp_eq_u32 s54, 0
        s_cselect_b32 s34, 1.0, 0
        """)
    def res_load(s, X, kind, r):
        k(f"s_mov_b32 s63, {X + s*4*TP}")
        k(f"buffer_load_dwordx4 {kind}[{r}:{r+3}], v{V_XFP}, s[24:27], s63 offen sc1", tag=("res", s))
        k(f"buffer_load_dwordx2 {kind}[{r+4}:{r+5}], v{V_XFS}, s[24:27], s63 offen sc1", tag=("res", s))
    def x1_math(e, q, y, S, x, t, pk=True):
        unpack_lo(e, t, q); unpack_hi(e, t + 1, q); unpack_lo(e, t + 2, y); unpack_hi(e, t + 3, y)
        if pk:
            e(f"v_pk_fma_f32 v[{t+4}:{t+5}], v[{t}:{t+1}], v[{S}:{S+1}], v[{S}:{S+1}] op_sel:[0,1,0] op_sel_hi:[1,1,0] neg_lo:[0,0,1] neg_hi:[0,0,1]")
            e(f"v_pk_fma_f32 v[{t+4}:{t+5}], v[{t+4}:{t+5}], v[{t+2}:{t+3}], v[{t}:{t+1}]")
        else:
            for i in range(2): e(f"v_fma_f32 v{t+4+i}, v{t+i}, v{S+1}, -v{S}")
            for i in range(2): e(f"v_fma_f32 v{t+4+i}, v{t+4+i}, v{t+2+i}, v{t+i}")
        e(f"v_cvt_pk_bf16_f32 v{x}, v{t+4}, v{t+5}")
    def xor_reduce(e, regs, t):
        for op in ("v_permlane16_swap_b32", "v_permlane32_swap_b32"):
            for i, r in enumerate(regs): e(f"v_mov_b32 v{t+i}, v{r}")
            for i, r in enumerate(regs): e(f"{op} v{r}, v{t+i}")
            for i, r in enumerate(regs): e(f"v_add_f32 v{r}, v{r}, v{t+i}")

    def flag_off(phase): return WS_FL + ((2 + phase) * 256 << FLS)
    def flag_store(sreg):
        k(f"s_mov_b64 exec, 1\nbuffer_store_dwordx2 v[{V_NON}:{V_NON+1}], off, s[24:27], s{sreg} sc1\ns_mov_b64 exec, -1")
    def flag_after_barrier(phase):
        l = k.newlabel("Lsg")
        k(f"s_cmp_lg_u32 s{S_WAVE}, 0\ns_cbranch_scc1 {l}")
        k(f"s_lshl_b32 s3, s45, {FLS}\ns_add_u32 s3, s3, {flag_off(phase)}")
        sv = list(k.vm); flag_store(3); k.vm = sv
        k(f"{l}:")
        k.ts(f"sig{phase}")
    def signal(e, phase, tag):
        e.wait_vm(tag)
        e.atomic(lambda: (k("s_barrier"), flag_after_barrier(phase)))
    def poll_issue(mkaddr, tag):
        k(f"{mkaddr}\ns_mov_b64 exec, 0xffff")
        k(f"buffer_load_dwordx2 v[{V_PL}:{V_PL+1}], v{V_FLG}, s[24:27], s33 offen sc1", tag=tag)
        k("s_mov_b64 exec, -1")
    def poll_check(tag, name):
        l, l2 = k.newlabel("Lpr"), k.newlabel("Lpo")
        k.ts(name + "_in")
        k.wait_vm(tag)
        sv = list(k.vm)
        k(f"""
        s_mov_b64 exec, 0xffff
        s_branch {l2}
        {l}:
        s_sleep {ENV("SLP", 2)}
        buffer_load_dwordx2 v[{V_PL}:{V_PL+1}], v{V_FLG}, s[24:27], s33 offen sc1
        s_waitcnt vmcnt(0)
        s_sub_u32 s{S_SPIN}, s{S_SPIN}, 1
        s_cbranch_scc1 {END}
        {l2}:
        v_cmp_ne_u64 vcc, v[{V_NON}:{V_NON+1}], v[{V_PL}:{V_PL+1}]
        s_cbranch_vccnz {l}
        s_mov_b64 exec, -1
        """)
        k.vm = sv
        k.ts(name + "_ok")
    def x_issue(phase): poll_issue(f"s_lshl_b32 s33, s41, {4+FLS}\ns_add_u32 s33, s33, {flag_off(phase)}", ("xp", phase))
    def x_check(phase): poll_check(("xp", phase), f"xp{phase}")
    def h_issue(ph): poll_issue(f"s_add_u32 s33, s67, {WS_FH + ph*262144}", ("hp", ph))
    def h_chk(ph): poll_check(("hp", ph), f"hp{ph}")
    def h_flag(ph):
        k.wait_vm(("hst", ph))
        k(f"s_add_u32 s3, s66, {WS_FH + ph*262144}"); flag_store(3)

    t = NT + 10
    S1, S2 = NT + 22, NT + 23
    k.ts("n_in")
    G.pace = ENV("PACEN", 16)
    ly, ly2 = k.newlabel("Lyp"), k.newlabel("Lyq")
    k.wait_vm("ny")
    sv = list(k.vm)
    k(f"s_branch {ly2}\n{ly}:\ns_sleep {ENV('YSL', 3)}")
    y_loads()
    k(f"s_waitcnt vmcnt(0)\ns_sub_u32 s{S_SPIN}, s{S_SPIN}, 1\ns_cbranch_scc1 {END}\n{ly2}:")
    for i in range(6): k(f"v_cmp_ne_u64 s[{76+2*i}:{77+2*i}], v[{V_NON}:{V_NON+1}], v[{NY4+4*i+2}:{NY4+4*i+3}]")
    k(f"""
    v_cmp_ne_u64 vcc, v[{V_NON}:{V_NON+1}], v[{NS+2}:{NS+3}]
    s_or_b64 s[84:85], s[84:85], s[86:87]
    s_and_b64 s[84:85], s[84:85], s[74:75]
    s_or_b64 s[76:77], s[76:77], s[78:79]
    s_or_b64 s[80:81], s[80:81], s[82:83]
    s_or_b64 vcc, vcc, s[84:85]
    s_or_b64 s[76:77], s[76:77], s[80:81]
    s_or_b64 vcc, vcc, s[76:77]
    s_cbranch_vccnz {ly}
    """)
    k.vm = sv
    k.ts("y_ok")
    for rho in range(3):
        for d in range(4):
            x1_math(D, NQ + 4 * rho + d, NY4 + 8 * rho + 4 * (d >> 1) + (d & 1), NS, NX + 4 * rho + d, t + 6 * (d & 1))
        for d in range(4):
            x = NX + 4 * rho + d; o = S1 + 2 * (d & 1); first = rho == 0 and d < 2
            D(f"v_dot2_f32_bf16 v{o}, v{x}, s55, " + ("0" if first else f"v{o}"))
            D(f"v_dot2_f32_bf16 v{o+1}, v{x}, v{x}, " + ("0" if first else f"v{o+1}"))
    U = 80
    for i in range(2): unpack_lo(D0, U + 2 * i, NX + i); unpack_hi(D0, U + 2 * i + 1, NX + i)
    D0(f"v_pk_add_f32 v[{S1}:{S2}], v[{S1}:{S2}], v[{S1+2}:{S1+3}]")
    for r in (S1, S2): D0(f"v_add_f32_dpp v{r}, v{r}, v{r} row_ror:8 row_mask:0xf bank_mask:0xf")
    xor_reduce(D0, [S1, S2], t)
    k(f"ds_write_b64 v{NT+8}, v[{S1}:{S2}]")
    for i in range(2, 7): unpack_lo(D0, U + 2 * i, NX + i); unpack_hi(D0, U + 2 * i + 1, NX + i)
    k("s_waitcnt lgkmcnt(0)\ns_barrier")
    for w in range(4): k(f"ds_read_b64 v[{t+2*w}:{t+2*w+1}], v{NT+7} offset:{64*w}")
    for i in range(7, 12): unpack_lo(D0, U + 2 * i, NX + i); unpack_hi(D0, U + 2 * i + 1, NX + i)
    k(f"""
    s_waitcnt lgkmcnt(0)
    v_pk_add_f32 v[{t}:{t+1}], v[{t}:{t+1}], v[{t+2}:{t+3}]
    v_pk_add_f32 v[{t+4}:{t+5}], v[{t+4}:{t+5}], v[{t+6}:{t+7}]
    v_pk_add_f32 v[{S1}:{S2}], v[{t}:{t+1}], v[{t+4}:{t+5}]
    """)
    ln_scalars(k, S1, S2, t)
    k(f"v_mul_f32 v{S1}, v{S1}, v{S2}")
    for rho in range(3):
        for d in range(4):
            u = U + 2 * (4 * rho + d)
            D0(f"v_pk_fma_f32 v[{u}:{u+1}], v[{u}:{u+1}], v[{S1}:{S2}], v[{S1}:{S2}] op_sel:[0,1,0] op_sel_hi:[1,1,0] neg_lo:[0,0,1] neg_hi:[0,0,1]")
        for d in range(4):
            u = U + 2 * (4 * rho + d)
            D0(f"v_cvt_pk_bf16_f32 v{NN+4*rho+d}, v{u}, v{u+1}")
        D0(f"s_add_u32 s3, {'s28' if rho == 2 else '0'}, {WS_XN + 8192*rho}")
        D0(f"buffer_store_dwordx4 v[{NN+4*rho}:{NN+4*rho+3}], v{NA}, s[24:27], s3 offen sc1", tag="xn")
    k.ts("n_out")
    G.burst(ENV("NB1", 8))
    late_setup()
    for i in range(12): D0(f"v_mov_b32 v{NY+i}, v{NY4 + 4*(i>>1) + (i&1)}")
    def colsum(ks, first):
        return [f"v_mfma_f32_16x16x32_bf16 v[{V_CS+4*mt}:{V_CS+4*mt+3}], a[{12*ks+4*mt}:{12*ks+4*mt+3}], a[{A_ONES}:{A_ONES+3}], " + ("0" if first else f"v[{V_CS+4*mt}:{V_CS+4*mt+3}]") for mt in range(3)]

    def cs_now(kss):
        for ks in kss:
            G.need([("w1", 3 * ks + x) for x in range(3)])
            for m in colsum(ks, ks == 8): k(m)
    cs_now(range(8, 13))
    signal(D0, 4, "xn")
    G.burst(ENV("NB2", 8))
    cs_now(range(13, 16))
    def frag_reads(u):
        return [f"ds_read_b128 v[{TB+16*(u&1)+4*tt}:{TB+16*(u&1)+4*tt+3}], v{V_L16} offset:{tt*12288 + (u % 12)*1024}" for tt in range(4)]
    def push_toks(X, layer, c0, c1, merge=True):
        rest = G.bg; G.bg = []
        for u in range(4 * c0, 4 * c1):
            c = u >> 2
            G.push(("tok", u), (lambda u=u: tok_dma(X, u)), ("bar", layer, c - 2) if c >= 3 else None)
        def key(t):
            tg = t[0]
            if tg[0] == "tok": return 4 * (tg[1] >> 2) - 1 - ENV("TKL", 3) + 0.01 * tg[1]
            if tg[0] == "w1": return KORD[(layer, 0)].index(tg[1] // 3) + 0.1 * (tg[1] % 3)
            return 1000
        G.bg = sorted(G.bg + rest, key=key)
    def tok_sync(layer, c):
        G.need([("tok", 4 * c + x) for x in range(4)])
        k("s_barrier"); G.mark(("bar", layer, c))

    def g1(s, layer, sides, cs=()):
        acc = RA if s == 0 else RB
        sc = Sched(G, sides)
        k.ts(f"g1_{s}_in")
        if s == 0:
            tok_sync(layer, 0)
            for rd in frag_reads(0): k(rd, tag=("fr", 0))
        for j in range(20):
            u = 20 * s + j; ks = KORD[(layer, s)][j]
            fine = "FINE" in EXP and layer == ENV("FL", 0)
            if fine and j % 2 == 1: k.ts(f"u{u}")
            G.need([("w1", 3 * ks + x) for x in range(3)])
            k.wait_lg(("fr", u))
            if (u + 1) % 4 == 0 and u + 1 < 40:
                if layer == 1 and u == 19 and "tokB" not in G.done: sc.flush(list(reversed(sides)))
                tok_sync(layer, (u + 1) >> 2)
                if fine: k.ts(f"b{u}")
            nxt = frag_reads(u + 1) if u + 1 < 40 else []
            mf = []
            for tt in range(4):
                for mt in range(3):
                    a = acc + 12 * tt + 4 * mt; b = TB + 16 * (u & 1) + 4 * tt
                    mf.append(f"v_mfma_f32_16x16x32_bf16 v[{a}:{a+3}], a[{12*ks+4*mt}:{12*ks+4*mt+3}], v[{b}:{b+3}], " + ("0" if j == 0 else f"v[{a}:{a+3}]"))
            if ks in cs: mf += colsum(ks, ks == min(cs))
            for n, m in enumerate(mf):
                k(m)
                bud = ENV("EBUD", 3) if ("EPIO" in EXP and s == 1 and ("epio", layer) not in G.done) else 2
                if nxt and n % 2 == 0:
                    k(nxt.pop(0), tag=("fr", u + 1)); k(nxt.pop(0), tag=("fr", u + 1)); bud -= 2
                if n == len(mf) - 1: G.mark(("ks", layer, s, ks)); G.mark(("st", layer, s, j)); bud -= 1
                sc.gap(bud)
        k.ts(f"g1_{s}_loop")
        sc.flush()
        if s == 1: k.forget(lambda t: isinstance(t, tuple) and (t[0] in ("fr", "tok") or (t[0] == "w1" and t[1] >= NL)))

    def poll16(e, sreg, mkaddr, tag, hold, name, d):
        r = V_TMP
        def loads(tg=None):
            for i in range(4): k(f"buffer_load_dwordx4 v[{r+4*i}:{r+4*i+3}], v{V_STR}, s[24:27], s{sreg} offen offset:{256*i} sc1", tag=tg)
        def poll():
            l, l2 = k.newlabel("Lst"), k.newlabel("Lso")
            k.ts(f"{name}_in")
            k.wait_vm(tag)
            sv = list(k.vm)
            k(f"s_branch {l2}\n{l}:\ns_sleep 1")
            loads()
            k(f"""
            s_waitcnt vmcnt(0)
            s_sub_u32 s{S_SPIN}, s{S_SPIN}, 1
            s_cbranch_scc1 {END}
            {l2}:
            v_cmp_ne_u64 s[68:69], v[{V_NON}:{V_NON+1}], v[{r+2}:{r+3}]
            v_cmp_ne_u64 s[70:71], v[{V_NON}:{V_NON+1}], v[{r+6}:{r+7}]
            v_cmp_ne_u64 s[72:73], v[{V_NON}:{V_NON+1}], v[{r+10}:{r+11}]
            v_cmp_ne_u64 vcc, v[{V_NON}:{V_NON+1}], v[{r+14}:{r+15}]
            s_or_b64 s[68:69], s[68:69], s[70:71]
            s_or_b64 vcc, vcc, s[72:73]
            s_or_b64 vcc, vcc, s[68:69]
            s_cbranch_vccnz {l}
            """)
            k.vm = sv
            k.ts(f"{name}_got")
        e.atomic(lambda: (k(mkaddr), loads(tag)))
        e.hold(hold)
        e.atomic(poll)
        e(f"""
        v_add_f32 v{r}, v{r}, v{r+4}
        v_add_f32 v{r+1}, v{r+1}, v{r+5}
        v_add_f32 v{r+8}, v{r+8}, v{r+12}
        v_add_f32 v{r+9}, v{r+9}, v{r+13}
        v_add_f32 v{d}, v{r}, v{r+8}
        v_add_f32 v{d+1}, v{r+1}, v{r+9}
        """)
    def stats_x3(e, s):
        t = V_TMP + 16
        S1, S2 = t, t + 1
        poll16(e, 31, f"s_lshl_b32 s31, s37, 12\ns_add_u32 s31, s31, {WS_ST2 + s*4*4096}", ("st2", s), 40, f"st2_{s}", S1)
        xor_reduce(e, [S1, S2], t + 2)
        ln_scalars(e, S1, S2, t + 2)
        e(f"v_bfe_u32 v{t+3}, v{V_L16}, 1, 7\ns_lshl_b32 s7, s{S_WAVE}, 7\nv_add_u32 v{t+3}, {L_SCR + 1024*s}, v{t+3}\nv_add_u32 v{t+2}, s7, v{t+3}")
        e(f"ds_write_b64 v{t+2}, v[{S1}:{S2}]", tag=("stw", s))
        e.hold(2)
        e.wait_lg(("stw", s))
        e("s_barrier")
        for tt in range(4): e(f"ds_read_b64 v[{V_TMP+2*tt}:{V_TMP+2*tt+1}], v{t+3} offset:{128*tt}", tag=("str", s))
        e.hold(3)
        e.wait_lg(("str", s))
        for tt in range(4):
            m, rs = V_TMP + 2 * tt, V_TMP + 2 * tt + 1
            d = V_ST + 3 * tt
            e(f"v_sub_f32 v{d}, 0, v{m}\nv_mul_f32 v{d+1}, {NL2E}, v{rs}\nv_mul_f32 v{d+2}, v{rs}, v{rs}\nv_rcp_f32 v{d+2}, v{d+2}")

    def bc(r): return f"v[{r & ~1}:{(r & ~1) + 1}]", r & 1
    def epi(e, s, H, layer):
        acc = RA if s == 0 else RB
        e.ts(f"epi_{s}_in")
        if layer == 0: e(f"v_mov_b32 v{V_ST}, {NL2E}")
        P, Q, R = V_TMP + 20, V_TMP + 21, V_TMP + 22
        for half in range(2):
            A = [acc + 24 * half + 4 * x for x in range(6)]
            T = [V_TMP + 2 * x for x in range(6)]
            NM = [V_ST + 3 * (2 * half + x // 3) for x in range(6)]
            if layer == 0:
                for a, t in zip(A, T): e(f"v_pk_mul_f32 v[{t}:{t+1}], v[{a}:{a+1}], v[{V_ST}:{V_ST+1}] op_sel_hi:[1,0]")
            else:
                for h in (0, 2):
                    for x, a in enumerate(A):
                        o1, b1 = bc(NM[x]); cs = V_CS + 4 * (x % 3)
                        e(f"v_pk_fma_f32 v[{a+h}:{a+h+1}], {o1}, v[{cs+h}:{cs+h+1}], v[{a+h}:{a+h+1}] op_sel:[{b1},0,0] op_sel_hi:[{b1},1,1]")
                    if h == 0:
                        for x, (a, t) in enumerate(zip(A, T)):
                            o2, b2 = bc(NM[x] + 1)
                            e(f"v_pk_mul_f32 v[{t}:{t+1}], v[{a}:{a+1}], {o2} op_sel:[0,{b2}] op_sel_hi:[1,{b2}]")
            for t in T: e(f"v_exp_f32 v{t}, v{t}\nv_exp_f32 v{t+1}, v{t+1}")
            for a in A: e(f"v_pk_mul_f32 v[{a}:{a+1}], v[{a}:{a+1}], v[{a+2}:{a+3}]")
            for x, t in enumerate(T):
                if layer == 0: e(f"v_pk_add_f32 v[{t}:{t+1}], v[{t}:{t+1}], 1.0 op_sel_hi:[1,0]")
                else:
                    o3, b3 = bc(NM[x] + 2)
                    e(f"v_pk_fma_f32 v[{t}:{t+1}], v[{t}:{t+1}], {o3}, {o3} op_sel:[0,{b3},{b3}] op_sel_hi:[1,{b3},{b3}]")
            for t in T: e(f"v_rcp_f32 v{t}, v{t}\nv_rcp_f32 v{t+1}, v{t+1}")
            for a, t in zip(A, T): e(f"v_pk_mul_f32 v[{a}:{a+1}], v[{a}:{a+1}], v[{t}:{t+1}]")
            for t2 in range(2):
                B = A[3 * t2:3 * t2 + 3]; o = V_TMP + 12 + 4 * t2
                e(f"v_cvt_pk_bf16_f32 v{P}, v{B[0]}, v{B[0]+1}\nv_cvt_pk_bf16_f32 v{Q}, v{B[1]}, v{B[1]+1}")
                e(f"v_cvt_pk_bf16_f32 v{R}, v{B[2]}, v{B[2]+1}\nv_cvt_pk_bf16_f32 v{o+3}, v{B[2]}, v{B[2]+1}")
                e(f"v_cvt_pk_bf16_f32 v{o}, v{B[0]}, v{B[0]+1}")
                e(f"v_permlane16_swap_b32 v{P}, v{Q}")
                e(f"v_cvt_pk_bf16_f32 v{o+1}, v{B[1]}, v{B[1]+1}")
                e(f"v_permlane16_swap_b32 v{R}, v{o+3}")
                e(f"v_cvt_pk_bf16_f32 v{o+2}, v{B[2]}, v{B[2]+1}")
                e(f"s_add_u32 s6, s36, {H + (4*s + 2*half + t2)*HP}")
                e(f"v_permlane32_swap_b32 v{Q}, v{o+3}")
                e.atomic(lambda o=o: k(f"s_mov_b64 exec, s[64:65]\nbuffer_store_dwordx4 v[{o}:{o+3}], v{V_L16}, s[24:27], s6 offen sc1\ns_mov_b64 exec, -1", tag=("hst", 2 * layer + s)))
        e.ts(f"epi_{s}_out")

    def epi_np(e, s, H, layer):
        acc = RA if s == 0 else RB
        P, Q, R = V_TMP + 20, V_TMP + 21, V_TMP + 22
        for tt in range(4):
            A = [acc + 12 * tt + 4 * x for x in range(3)]
            T = [V_TMP + 2 * x for x in range(3)]
            nm = V_ST + 3 * tt; o = V_TMP + 12 + 4 * (tt & 1)
            if layer == 1:
                for mt, a in enumerate(A):
                    for x in range(4): e(f"v_fma_f32 v{a+x}, v{nm}, v{V_CS+4*mt+x}, v{a+x}")
            for a, t in zip(A, T):
                for x in range(2): e(f"v_mul_f32 v{t+x}, {NL2E if layer == 0 else 'v%d' % (nm + 1)}, v{a+x}")
            for t in T:
                for x in range(2): e(f"v_exp_f32 v{t+x}, v{t+x}")
            for a in A:
                for x in range(2): e(f"v_mul_f32 v{a+x}, v{a+x}, v{a+2+x}")
            for t in T:
                for x in range(2): e(f"v_add_f32 v{t+x}, 1.0, v{t+x}" if layer == 0 else f"v_fma_f32 v{t+x}, v{t+x}, v{nm+2}, v{nm+2}")
            for t in T:
                for x in range(2): e(f"v_rcp_f32 v{t+x}, v{t+x}")
            for a, t in zip(A, T):
                for x in range(2): e(f"v_mul_f32 v{a+x}, v{a+x}, v{t+x}")
            B = A
            e(f"v_cvt_pk_bf16_f32 v{P}, v{B[0]}, v{B[0]+1}\nv_cvt_pk_bf16_f32 v{Q}, v{B[1]}, v{B[1]+1}")
            e(f"v_cvt_pk_bf16_f32 v{R}, v{B[2]}, v{B[2]+1}\nv_cvt_pk_bf16_f32 v{o+3}, v{B[2]}, v{B[2]+1}")
            e(f"v_cvt_pk_bf16_f32 v{o}, v{B[0]}, v{B[0]+1}")
            e(f"v_permlane16_swap_b32 v{P}, v{Q}")
            e(f"v_cvt_pk_bf16_f32 v{o+1}, v{B[1]}, v{B[1]+1}")
            e(f"v_permlane16_swap_b32 v{R}, v{o+3}")
            e(f"v_cvt_pk_bf16_f32 v{o+2}, v{B[2]}, v{B[2]+1}")
            e(f"s_add_u32 s6, s36, {H + (4*s + tt)*HP}")
            e(f"v_permlane32_swap_b32 v{Q}, v{o+3}")
            e.atomic(lambda o=o: k(f"s_mov_b64 exec, s[64:65]\nbuffer_store_dwordx4 v[{o}:{o+3}], v{V_L16}, s[24:27], s6 offen sc1\ns_mov_b64 exec, -1", tag=("hst", 2 * layer + s)))
        e.ts(f"epi_{s}_out")

    def h_load(s, H, i):
        pg, t2, g = PGORD[s][i // 6], (i // 3) & 1, i % 3
        if k.last_h != (H, s, i // 3): k(f"s_add_u32 s32, s35, {H + (4*s + t2)*HP + pg*3072}")
        k.last_h = (H, s, i // 3)
        r = hq(i)
        k(f"buffer_load_dwordx4 v[{r}:{r+3}], v{V_L16}, s[24:27], s32 offen offset:{1024*g} sc1", tag=("h", s, i))
    def push_h(s, H, layer):
        for i in range(24):
            G.push(("h", s, i), (lambda s=s, i=i: h_load(s, H, i)), ("hfree", layer, i // 6) if s == 1 else None)

    def g2(s, H, layer, sides, at=None):
        at = at or {}
        acc = RB
        sc = Sched(G, sides)
        seq = [(j, g, mt) for j in range(4) for g in range(3) for mt in range(5)]
        fr = [5 * (3 * PGORD[s][j] + g) + mt for (j, g, mt) in seq]
        lseq = [f for f in fr if f < NL]
        lq = {f: TB + 4 * (x % 8) for x, f in enumerate(lseq)}
        issued = [0]
        def lread():
            f = lseq[issued[0]]; issued[0] += 1
            k(f"ds_read_b128 v[{lq[f]}:{lq[f]+3}], v{V_WL} offset:{1024*f}", tag=("wl", f))
        if layer == 0 and s == 0: G.need([("w2l", f) for f in range(NL)])
        for _ in range(6): lread()
        n = 0; used = 0
        for x, (j, g, mt) in enumerate(seq):
            f = fr[x]
            if mt == 0: G.need([("h", s, 6 * j + 3 * t2 + g) for t2 in range(2)])
            if x == 0: k.ts(f"g2_{s}_go")
            if f < NL: k.wait_lg(("wl", f)); W = f"v[{lq[f]}:{lq[f]+3}]"
            else: G.need(("w2", f)); W = f"a[{4*f}:{4*f+3}]"
            for t2 in range(2):
                a = acc + 20 * t2 + 4 * mt; b = hq(6 * j + 3 * t2 + g)
                k(f"v_mfma_f32_16x16x32_bf16 v[{a}:{a+3}], {W}, v[{b}:{b+3}], " + ("0" if x < 5 else f"v[{a}:{a+3}]"))
                bud = 2
                if t2 == 0 and f < NL and issued[0] < len(lseq): lread(); bud -= 1
                if t2 == 1:
                    if f < NL: bud -= 1
                    G.mark(("wf", layer, s, f))
                    if mt == 4 and g == 2 and s == 0: G.mark(("hfree", layer, j))
                n += 1
                if n in at: at[n]()
                else: sc.gap(bud)
        k.ts(f"g2_{s}_loop")
        sc.flush()
        k.forget(lambda t: isinstance(t, tuple) and ((t[0] == "h" and t[1] == s) or t[0] == "wl" or (t[0] == "w2" and s == 1)))

    def red(e, s, at_barrier=None):
        R = RB
        e(f"s_mul_i32 s3, s{S_WAVE}, 10240\nv_add_u32 v{V_TMP+16}, s3, v{V_L16}")
        for t in range(10): e(f"ds_write_b128 v{V_TMP+16}, v[{R+4*t}:{R+4*t+3}] offset:{1024*t}", tag=("rw", s))
        assert not any(x[0][0] in ("rx", "ry") for x in G.bg)
        e.wait_vm(("res", 1))
        for j in range(3):
            xr = V_XR + 6 * s + 2 * j
            for i in range(4): unpack(e, V_TMP + 4 * j + i, xr + (i >> 1), i & 1)
        e.wait_lg(("rw", s))
        if at_barrier: e.wait_vm(at_barrier[1])
        e("s_barrier")
        for j in range(3):
            for wp in range(4):
                r = R + 16 * j + 4 * wp
                e(f"ds_read_b128 v[{r}:{r+3}], v{V_RDP if j < 2 else V_RDS} offset:{10240*wp + (1024*j if j < 2 else 0)}", tag=("rd", s, j))
        if at_barrier: flag_after_barrier(at_barrier[0])
        def add4(d, a, b):
            e(f"v_pk_add_f32 v[{d}:{d+1}], v[{a}:{a+1}], v[{b}:{b+1}]\nv_pk_add_f32 v[{d+2}:{d+3}], v[{a+2}:{a+3}], v[{b+2}:{b+3}]")
        for j in range(3):
            r = R + 16 * j
            e.wait_lg(("rd", s, j))
            add4(r, r, r + 4); add4(r + 8, r + 8, r + 12)
        for j in range(3): add4(R + 16 * j, R + 16 * j, R + 16 * j + 8)
        for j in range(3):
            r = R + 16 * j
            e(f"v_cvt_pk_bf16_f32 v{r+4}, v{r}, v{r+1}\nv_cvt_pk_bf16_f32 v{r+5}, v{r+2}, v{r+3}")
        for j in range(3):
            r = R + 16 * j
            for i in range(4): unpack(e, r + i, r + 4 + (i >> 1), i & 1)
        for j in range(3): add4(R + 16 * j, R + 16 * j, V_TMP + 4 * j)
        for j in range(3):
            r = R + 16 * j; xr = V_XR + 6 * s + 2 * j
            e(f"v_cvt_pk_bf16_f32 v{xr}, v{r}, v{r+1}\nv_cvt_pk_bf16_f32 v{xr+1}, v{r+2}, v{r+3}")
        e.ts(f"red{s}")

    def part_stats(e, s, ST):
        S1, S2 = V_TMP + 16, V_TMP + 17
        a = V_TMP + 18; b = V_TMP + 20
        xr = V_XR + 6 * s
        for d in range(2):
            for o, x in ((S1, xr + d), (a, xr + 2 + d), (b, xr + 4 + d)):
                e(f"v_dot2_f32_bf16 v{o}, v{x}, s55, " + ("0" if d == 0 else f"v{o}"))
                e(f"v_dot2_f32_bf16 v{o+1}, v{x}, v{x}, " + ("0" if d == 0 else f"v{o+1}"))
        e(f"v_add_f32 v{S1}, v{S1}, v{a}\nv_add_f32 v{S2}, v{S2}, v{a+1}")
        e(f"v_fma_f32 v{S1}, v{b}, s34, v{S1}\nv_fma_f32 v{S2}, v{b+1}, s34, v{S2}")
        xor_reduce(e, [S1, S2], V_TMP + 20)
        e(f"v_mov_b32 v{S1+2}, v{V_NON}\nv_mov_b32 v{S1+3}, v{V_NON+1}")
        def st():
            k(f"s_mov_b32 s7, {ST + s*4*4096}\ns_mov_b64 exec, 0xffff")
            k(f"buffer_store_dwordx4 v[{S1}:{S1+3}], v{V_STW}, s[24:27], s7 offen sc1")
            k("s_mov_b64 exec, -1")
        e.atomic(st)

    def mid2(e, s, hold=30, pk=False, ps=True):
        t = V_TMP
        poll16(e, 31, f"s_add_u32 s31, s39, {WS_ST + s*4*4096}", ("stp", s), hold, f"mid2_{s}", t)
        xor_reduce(e, [t, t + 1], t + 2)
        ln_scalars(e, t, t + 1, t + 2)
        e(f"v_mul_f32 v{t}, v{t}, v{t+1}\ns_mov_b32 s30, {WS_X3 + s*4*TP}")
        xr = V_XR + 6 * s
        for d in range(6):
            e(f"v_accvgpr_read_b32 v{t+2+(d&1)}, a{A_Y+6*s+d}")
            x1_math(e, xr + d, t + 2 + (d & 1), t, xr + d, t + 4 + 6 * (d & 1), pk)
            if d == 3: e(f"buffer_store_dwordx4 v[{xr}:{xr+3}], v{V_XFP}, s[24:27], s30 offen sc1", tag=("x3", s))
        e(f"buffer_store_dwordx2 v[{xr+4}:{xr+5}], v{V_XFS}, s[24:27], s30 offen sc1", tag=("x3", s))
        e.ts(f"x3_{s}")
        if ps: part_stats(e, s, WS_ST2)

    def out_store(e, s):
        xr = V_XR + 6 * s
        e(f"""
        s_mov_b32 s3, {s*64*1280}
        buffer_store_dwordx4 v[{xr}:{xr+3}], v{V_OUP}, s[16:19], s3 offen
        buffer_store_dwordx2 v[{xr+4}:{xr+5}], v{V_OUS}, s[16:19], s3 offen
        """)

    w2f_issue()
    x_issue(4)
    G.burst(ENV("NB3", 8))
    x_check(4)
    w2f_check()
    push_toks(WS_XN, 0, 0, 10)
    G.burst(ENV("NB4", 8))
    cs_now(range(16, 20))
    for f in range(NL): G.push(("w2l", f), lambda f=f: w2l_dma(f), ("bar", 0, 0))
    G.pace = PACE
    for layer in range(2):
        H = WS_H1 if layer == 0 else WS_H2
        sa = Rec(k)
        if layer == 1:
            sa.until(("st", 1, 0, 1))
            signal(sa, 1, ("x3", 1))
            sa.atomic(lambda: G.mark("sig1"), 0)
            stats_x3(sa, 0)
            sx = Rec(k)
            sx.until("sig1"); sx.hold(ENV("XIH", 36)); sx.atomic(lambda: x_issue(1))
            sx.hold(30); sx.atomic(lambda: (x_check(1), push_toks(WS_X3, 1, 5, 10), G.burst(4)))
            sx.atomic(lambda: G.mark("tokB"), 0)
            g1(0, 1, [sx, sa])
        else:
            sa.until(("st", 0, 0, ENV("XYS", 4)))
            for rho in range(3):
                for X, r in ((WS_X1, NX), (WS_YF, NY)):
                    sa.atomic(lambda rho=rho, X=X, r=r: k(f"s_add_u32 s3, {'s28' if rho == 2 else '0'}, {X + 8192*rho}\nbuffer_store_dwordx4 v[{r+4*rho}:{r+4*rho+3}], v{NA}, s[24:27], s3 offen sc1"))
                    sa.hold(16)
            g1(0, 0, [sa])
        sp = Rec(k); sq = Rec(k)
        if "EPIO" in EXP:
            epi_np(sq, 0, H, layer); sq.atomic(lambda: G.mark(("epio", layer)), 0)
            G.boost = sq; G.boost_n = 0 if layer == 0 else 10**9
            sp.until(("epio", layer)); sp.hold(ENV("EH1", 26)); sp.atomic(lambda: h_flag(2 * layer))
            sp.hold(ENV("EH2", 36)); sp.atomic(lambda: h_issue(2 * layer))
            sp.hold(ENV("EH3", 28))
        else:
            epi(D, 0, H, layer)
            sp.until(("st", layer, 1, 2)); sp.atomic(lambda: h_flag(2 * layer))
            sp.until(("st", layer, 1, 6)); sp.atomic(lambda: h_issue(2 * layer))
            sp.until(("st", layer, 1, 9))
        if layer == 1: stats_x3(sq, 1)
        def prb_a_chk():
            h_chk(2 * layer)
            rest = G.bg; G.bg = []
            push_h(0, H, layer)
            items = [((t[0][1] / 5.0 if t[0][0] == "w2" else -100), t) for t in rest] + [(3 * (t[0][2] // 6) - 1 + 0.01 * t[0][2], t) for t in G.bg]
            items.sort(key=lambda x: x[0])
            G.bg = [t for _, t in items]
        sp.atomic(prb_a_chk)
        for f in range(NL, 60): push_w2(f, ("ks", layer, 1, (4 * f + 3) // 12))
        g1(1, layer, [sp, sq])
        G.pace = ENV("PACEE", 12)
        epi(D, 1, H, layer)
        G.pace = PACE2
        k("s_barrier")
        if layer == 0:
            for s_ in range(2):
                G.push(("rx", s_), lambda s_=s_: res_load(s_, WS_X1, "v", V_XR + 6 * s_))
                G.push(("ry", s_), lambda s_=s_: res_load(s_, WS_YF, "a", A_Y + 6 * s_))
        def prb_b_chk():
            h_chk(2 * layer + 1); push_h(1, H, layer); G.burst(ENV("NB5", 6))
        g2(0, H, layer, [], {ENV("HF", 30): lambda: h_flag(2 * layer + 1), ENV("HI", 75): lambda: h_issue(2 * layer + 1), ENV("HC", 110): prb_b_chk})
        red(D, 0)
        if layer == 0:
            part_stats(D, 0, WS_ST)
            sm = Rec(k); mid2(sm, 0, 0, pk=True, ps=False)
            first = sm.items.pop(0)[1]
            g2(1, H, layer, [], {ENV("MI", 45): first, ENV("MC", 80): lambda: Sched(G, [sm]).flush(), ENV("MS", 118): lambda: signal(D0, 0, ("x3", 0))})
            G.pace = PACE
            red(D, 1)
            x_issue(0)
            part_stats(D, 1, WS_ST)
            part_stats(D, 0, WS_ST2)
            for ks in range(0, ENV("CSA", 2)):
                for m in colsum(ks, False): k(m)
            x_check(0)
            k("s_barrier")
            push_toks(WS_X3, 1, 0, 5)
            G.burst(ENV("NB6", 4))
            carry = Rec(k); mid2(carry, 1, 0, pk=True, ps=False)
            carry.items.pop(0)[1]()
            G.burst(ENV("NB7", 8))
            for ks in range(ENV("CSA", 2), 8):
                for m in colsum(ks, False): k(m)
            Sched(Glob(k), [carry]).flush()
            for f in range(NL, 60): push_w1(f)
            push_toks(WS_X3, 1, 0, 0)
            G.burst(ENV("NB8", 4))
            part_stats(D, 1, WS_ST2)
        else:
            out_store(D, 0)
            sm = Rec(k); sm.hold(20); sm("s_barrier")
            g2(1, H, layer, [sm])
            red(D, 1)
            out_store(D, 1)
    assert not G.bg, G.bg
    if dbg:
        k.ts_flush(24, WS_DBG + 65536)
        open("ts_names.txt", "w").write(" ".join(k.tsn))
    k(f"{END}:")
    return k

if __name__ == "__main__":
    import sys
    dbg = len(sys.argv) > 1
    k = gen_k2(dbg)
    txt = build([k], [k]).replace(f"; @launch kernel={k.name} grid", "; @launch grid")
    open(os.environ.get("OUT", "full.s"), "w").write(txt)
    print("fused", k.ninstr, k.nnop)
```
